```python
import torch

def _softmax(x, axis=-1):
    return torch.softmax(x, dim=axis)
def _gelu(x):
    return torch.nn.functional.gelu(x, approximate="tanh")
def _silu(x):
    return torch.nn.functional.silu(x)
def _sigmoid(x):
    return torch.sigmoid(x)
def _layernorm(x, axis=-1, eps=1e-5):
    m = x.mean(dim=axis, keepdim=True)
    v = x.var(dim=axis, keepdim=True, unbiased=False)
    return (x - m) / torch.sqrt(v + eps)
def _scatter_add(tgt, idx, src, axis=0):
    return tgt.clone().index_add_(axis, idx, src)
def _segment_sum(src, seg, n):
    out = torch.zeros((n,) + src.shape[1:], dtype=src.dtype)
    return out.index_add_(0, seg, src)
def _pad(x, pw):
    flat = tuple(v for pair in reversed(pw) for v in pair)
    return torch.nn.functional.pad(x, flat)

kernel_name = 'standalone__gqa_softmax__near_ridge'

def setup_inputs():

    _w = (lambda a: (lambda t: t.to(torch.bfloat16) if t.is_floating_point() else t)(torch.as_tensor(a)))
    B, Hq, Hkv, Sq, Sk, D = 16, 16, 8, 192, 512, 256
    return {
        "q": _w((lambda *s: torch.randn(*s, dtype=torch.bfloat16) * 0.8)(B, Hq, Sq, D)),
        "k": _w((lambda *s: torch.randn(*s, dtype=torch.bfloat16) * 0.8)(B, Hkv, Sk, D)),
        "v": _w((lambda *s: torch.randn(*s, dtype=torch.bfloat16) * 0.05)(B, Hkv, Sk, D)),
    }

def reference(q, k, v):
    B, Hq, Sq, D = q.shape
    Hkv = k.shape[1]
    rep = Hq // Hkv
    k = (lambda x, n, axis: torch.repeat_interleave(x, n, dim=axis))(k, rep, axis=1)
    v = (lambda x, n, axis: torch.repeat_interleave(x, n, dim=axis))(v, rep, axis=1)
    scale = D ** -0.5
    scores = torch.einsum("bhqd,bhkd->bhqk", q, k) * scale
    p = _softmax(scores, axis=-1)
    return torch.einsum("bhqk,bhkd->bhqd", p, v)
```

```python
import sys, re

NAME = "standalone__gqa_softmax__near_ridge_kernel"

class Opt:
    ld_pol = "nt"
    q_pol = "nt"
    st_pol = "nt"
    code_pf = True
    stamps = False
    thresh = 0x47800000
    force_fb = False
    DK = 6
    DV = 6
    pro_units = (1, 2, 4, 6, 8)

SLOT = 16896
NSLOT = 9
KP = 1056
VP = 1032
FLAG_OFF = SLOT * NSLOT
LDS_BYTES = FLAG_OFF + 64

V_QO = 1
V_KR = (2, 3, 4)
V_KD = (5, 6, 7, 8)
V_VD = (9, 10, 11, 12)
V_VR = ((13, 14, 15), (16, 17, 18))
V_T = 19
V_NEGM = 28
V_S = 40
V_P = 64
A_Q = 0
A_VF = 96
A_L = 128
A_ONE = 140
A_KF = 144
A_ACC = (144, 192)
S_W = 3
S_QSRD, S_KSRD, S_VSRD, S_OSRD = 8, 12, 16, 20
S_WK, S_WV, S_OFF = 28, 29, 30
S_8K, S_16K = 31, 32
S_C = 34
S_TH = 33
S_RESTART = 36
S_MASK = 37
S_CODE = 40
S_PC = 44
S_TMP = 46


def vr(a, n=1):
    return f"v{a}" if n == 1 else f"v[{a}:{a+n-1}]"
def ar(a, n=1):
    return f"a{a}" if n == 1 else f"a[{a}:{a+n-1}]"
def R(kind, a, n=1):
    return {(kind, a + k) for k in range(n)}


class I:
    __slots__ = ("text", "kind", "rd", "wr", "srcc", "tag", "wait", "meta")
    def __init__(self, text, kind, rd=(), wr=(), srcc=(), tag=None, wait=None, meta=None):
        self.text, self.kind = text, kind
        self.rd, self.wr, self.srcc = set(rd), set(wr), set(srcc)
        self.tag, self.wait, self.meta = tag, wait, meta
    @property
    def cost(self):
        return {"mfma": 8, "trans": 8, "dma": 8, "store": 8, "label": 0, "raw": 0}.get(self.kind, 4)


def mfma(dk, d, ak, a, bk, b, c=None, meta=None):
    f = {"v": vr, "a": ar}
    if c is None:
        ctext, srcc = f[dk](d, 4), R(dk, d, 4)
    elif c == "zero":
        ctext, srcc = "0", set()
    else:
        ctext, srcc = f[dk](c, 4), R(dk, c, 4)
    t = f"v_mfma_f32_16x16x32_bf16 {f[dk](d,4)}, {f[ak](a,4)}, {f[bk](b,4)}, {ctext}"
    return I(t, "mfma", rd=R(ak, a, 4) | R(bk, b, 4) | srcc, wr=R(dk, d, 4), srcc=srcc, meta=meta)


def valu(text, rd=(), wr=(), kind="valu"):
    return I(text, kind, rd=rd, wr=wr)
def salu(text):
    return I(text, "salu")
def wait_ds(tag):
    return I(None, "wait", wait=("ds", tag))
def wait_vm(tag):
    return I(None, "wait", wait=("vm", tag))
def raw(text):
    return I(text, "raw")


def unit_dma(o, n):
    slot = n % NSLOT
    out = []
    if n < 16:
        out.append(salu(f"s_add_u32 m0, s{S_WK}, {slot*SLOT}"))
        out.append(salu(f"s_mov_b32 s{S_OFF}, {n*16384}"))
        for j in range(4):
            out.append(I(f"buffer_load_dwordx4 v{V_KD[j]}, s[{S_KSRD}:{S_KSRD+3}], s{S_OFF} offen offset:{j*KP} {o.ld_pol} lds",
                         "dma", rd=R("v", V_KD[j]), tag=("u", n, j)))
    else:
        c, kr = (n - 16) // 4, (n - 16) % 4
        out.append(salu(f"s_add_u32 m0, s{S_WV}, {slot*SLOT}"))
        out.append(salu(f"s_mov_b32 s{S_OFF}, {kr*65536 + c*128}"))
        for j in range(4):
            out.append(I(f"buffer_load_dwordx4 v{V_VD[j]}, s[{S_VSRD}:{S_VSRD+3}], s{S_OFF} offen offset:{j*VP} {o.ld_pol} lds",
                         "dma", rd=R("v", V_VD[j]), tag=("u", n, j)))
    return out


def k_read(F):
    hs, ks = F // 8, F % 8
    u, kb = hs // 2, hs % 2
    slot = u % NSLOT
    off = (slot % 3) * SLOT + kb * 8 * KP + ks * 64
    dst = A_KF + 4 * (F % 16)
    return I(f"ds_read_b128 {ar(dst,4)}, v{V_KR[slot//3]} offset:{off}", "ds",
             rd=R("v", V_KR[slot // 3]), wr=R("a", dst, 4), tag=("kf", F))


def v_frag_info(G, order):
    st, f = G // 16, G % 16
    kc, db = order(st, f)
    return st, kc, db


def v_order(st, f):
    if st == 15:
        return f % 4, f // 4
    return f // 4, f % 4


def v_reads(G):
    st, kc, db = v_frag_info(G, v_order)
    n = 16 + st
    slot = n % NSLOT
    dp, h = db // 2, db % 2
    dst = A_VF + 4 * (G % 8)
    out = []
    for kb in range(2):
        off = (slot % 3) * SLOT + (4 * kc + 2 * kb) * VP + 8 * h
        a = V_VR[dp][slot // 3]
        out.append(I(f"ds_read_b64_tr_b16 {ar(dst+2*kb,2)}, v{a} offset:{off}", "ds",
                     rd=R("v", a), wr=R("a", dst + 2 * kb, 2), tag=("vf", G, kb)))
    return out


def P_reg(u, qb):
    return V_P + 12 * u + 4 * qb
def S_reg(hs, qb):
    return V_S + 12 * (hs % 2) + 4 * qb


class Sched:
    def __init__(self):
        self.M = []
        self.G = []
        self.over = 0
    def add(self, m):
        self.M.append(m); self.G.append([])
        return len(self.M) - 1
    def load(self, g):
        return sum(i.cost for _, i in self.G[g])
    def fits(self, g, ins):
        cur = self.G[g]
        if self.load(g) + ins.cost > 8:
            return False
        if ins.kind in ("ds", "dma", "store"):
            pass
        return True
    def put(self, g, ins, last=False):
        self.G[g].append((1 if last else 0, ins))
    def place(self, ins, lo, hi, last=False):
        hi = min(hi, len(self.M) - 1)
        lo = min(lo, hi)
        for g in range(lo, hi + 1):
            if self.fits(g, ins) and not any(k == 1 and False for k, _ in self.G[g]):
                self.put(g, ins, last); return g
        g = min(range(lo, hi + 1), key=lambda x: self.load(x))
        self.over += 1
        self.put(g, ins, last); return g
    def linear(self):
        out = []
        rank = {"ds": 0, "dma": 0, "store": 0, "salu": 1, "wait": 1, "bar": 1, "valu": 2, "trans": 2}
        for m, gap in zip(self.M, self.G):
            out.append(m)
            body = [x for x in gap]
            if any(i.meta == "seq" for _, i in body):
                body.sort(key=lambda t: t[0])
            else:
                body.sort(key=lambda t: (t[0], rank[t[1].kind]))
            out += [i for _, i in body]
        return out


def build_main(o):
    s = Sched()
    hs_first = {}
    qk_idx = {}
    one = A_ONE
    sum_idx = {}
    for hs in range(1, 32):
        if hs % 2 == 1 and hs >= 3:
            u = (hs - 3) // 2
            for qb in range(3):
                sum_idx[(u, qb)] = s.add(mfma("a", A_L + 4 * qb, "a", one, "v", P_reg(u, qb), c=("zero" if u == 0 else None)))
        for ks in range(8):
            F = hs * 8 + ks
            for qb in range(3):
                m = mfma("v", S_reg(hs, qb), "a", A_KF + 4 * (F % 16), "a", A_Q + 4 * (qb * 8 + ks),
                         c=(V_NEGM + 4 * qb if ks == 0 else None))
                qk_idx[(hs, 3 * ks + qb)] = s.add(m)
    pv_idx = {}
    last_acc = {}
    for G in range(256):
        st, kc, db = v_frag_info(G, v_order)
        c, kr = st // 4, st % 4
        u = 4 * kr + kc
        if G == 14:
            for qb in range(3):
                sum_idx[(15, qb)] = s.add(mfma("a", A_L + 4 * qb, "a", one, "v", P_reg(15, qb)))
        for qb in range(3):
            d = A_ACC[c % 2] + 12 * db + 4 * qb
            first = (u == 0) if st != 15 else (u == 0)
            m = mfma("a", d, "a", A_VF + 4 * (G % 8), "v", P_reg(u, qb), c=("zero" if u == 0 else None))
            pv_idx[(G, qb)] = s.add(m)
            last_acc[(c, db, qb)] = pv_idx[(G, qb)]
    N = len(s.M)

    DK, DV = o.DK, o.DV
    assert DK == 6
    def fg(hs, k, g):
        return qk_idx[(hs, 6 * k + g)]
    sp_gap = {}
    def put_sp(n, g):
        sp_gap[n] = g
        w = wait_vm(("u", n, 3)); w.meta = "seq"
        s.put(g, w); b = I("s_barrier", "bar"); b.meta = "seq"; s.put(g, b)
    for hs in range(1, 32):
        for k in range(4):
            F0 = hs * 8 + 2 * k
            for j in range(2):
                F = F0 + DK + j
                if F < 256:
                    s.put(fg(hs, k, 0), k_read(F))
                else:
                    for r in v_reads(F - 256):
                        s.put(fg(hs, k, 0), r)
            if not (hs == 31 and k == 3):
                s.put(fg(hs, k, 5), wait_ds(("kf", F0 + 3)), last=True)
        if hs % 2 == 1:
            put_sp((hs + 1) // 2, fg(hs, 0, 3))
    for G in range(DV, 256):
        g0 = pv_idx[(G - DV, 0)]
        if G % 16 == 0:
            put_sp(16 + G // 16, g0 - 2)
        for r in v_reads(G):
            s.put(g0, r)
    for G in range(0, 256, 2):
        g = pv_idx[(G, 0)] - 1
        s.put(g, wait_ds(("vf", G + 1, 1)), last=True)

    for n in range(1, 25):
        ins = unit_dma(o, n + 7)
        if n <= 16:
            hs = 2 * n - 1
            if hs >= 3:
                u = (hs - 3) // 2
                s.put(sum_idx[(u, 0)], ins[0]); s.put(sum_idx[(u, 0)], ins[1])
            else:
                s.put(fg(hs, 0, 0), ins[0]); s.put(fg(hs, 0, 1), ins[1])
            s.put(fg(hs, 1, 3), ins[2]); s.put(fg(hs, 2, 3), ins[3])
            if hs + 1 <= 31:
                s.put(fg(hs + 1, 0, 3), ins[4]); s.put(fg(hs + 1, 2, 3), ins[5])
            else:
                g = pv_idx[(0, 1)]
                s.put(g, ins[4]); s.put(pv_idx[(2, 1)], ins[5])
        else:
            lo = sp_gap[n] + 1
            hi = (sp_gap[n + 1] - 1)
            g0 = s.place(ins[0], lo, hi)
            g1 = s.place(ins[1], g0, hi)
            g = max(g0, g1) + 1
            for d in ins[2:]:
                g = s.place(d, g, hi) + 4

    def exp_i(hs, qb, r):
        b = S_reg(hs, qb) + r
        return valu(f"v_exp_f32 v{b}, v{b}", rd=R("v", b), wr=R("v", b), kind="trans")
    def cvt_i(hs, qb, p):
        b = S_reg(hs, qb) + 2 * p
        dst = P_reg(hs // 2, qb) + 2 * (hs % 2) + p
        return valu(f"v_cvt_pk_bf16_f32 v{dst}, v{b}, v{b+1}", rd=R("v", b, 2), wr=R("v", dst))
    for hs in range(0, 31):
        h = hs + 1
        for e in range(12):
            s.put(fg(h, e // 3, (1, 2, 4)[e % 3]), exp_i(hs, e // 4, e % 4))
        if h % 2 == 0:
            pos = {(0, 0): (0, 5), (0, 1): (1, 3), (1, 0): (1, 5), (1, 1): (2, 5), (2, 0): (3, 3), (2, 1): (3, 5)}
        else:
            pos = {(0, 0): (0, 5), (0, 1): (1, 5), (1, 0): (2, 5), (1, 1): (3, 3), (2, 0): (3, 3), (2, 1): (3, 5)}
        for (qb, p), (k, g) in pos.items():
            s.put(fg(h, k, g), cvt_i(hs, qb, p))
    g = qk_idx[(31, 23)] + 2
    hi = sum_idx[(15, 0)] - 2
    for qb in range(3):
        eg = []
        for r in range(4):
            ge = s.place(exp_i(31, qb, r), g, hi); eg.append(ge); g = ge + 1
        for p in range(2):
            s.place(cvt_i(31, qb, p), eg[2 * p + 1] + 1, hi)

    gl = sum_idx[(15, 2)] + 5
    t = V_T
    chk = []
    for qb in range(3):
        chk.append(valu(f"v_accvgpr_read_b32 v{V_NEGM+qb}, a{A_L+4*qb}", rd=R("a", A_L + 4 * qb), wr=R("v", V_NEGM + qb)))
    chk.append(valu(f"v_cmp_nge_f32 vcc, s{S_TH}, v{V_NEGM}", rd=R("v", V_NEGM)))
    chk.append(valu(f"v_cmp_nge_f32 s[{S_TMP}:{S_TMP+1}], s{S_TH}, v{V_NEGM+1}", rd=R("v", V_NEGM + 1)))
    chk.append(valu(f"v_cmp_nge_f32 s[{S_TMP+2}:{S_TMP+3}], s{S_TH}, v{V_NEGM+2}", rd=R("v", V_NEGM + 2)))
    g = gl
    for ins in chk:
        g = s.place(ins, g, g + 8) + 1
    seq = [
        valu(f"v_rcp_f32 v{V_NEGM}, v{V_NEGM}", rd=R("v", V_NEGM), wr=R("v", V_NEGM), kind="trans"),
        valu(f"v_rcp_f32 v{V_NEGM+1}, v{V_NEGM+1}", rd=R("v", V_NEGM + 1), wr=R("v", V_NEGM + 1), kind="trans"),
        valu(f"v_rcp_f32 v{V_NEGM+2}, v{V_NEGM+2}", rd=R("v", V_NEGM + 2), wr=R("v", V_NEGM + 2), kind="trans"),
        salu(f"s_or_b64 vcc, vcc, s[{S_TMP}:{S_TMP+1}]"),
        salu(f"s_or_b64 vcc, vcc, s[{S_TMP+2}:{S_TMP+3}]"),
        "PAIR",
        valu(f"v_mov_b32 v{t}, s{S_TMP}", wr=R("v", t)),
        valu(f"v_mov_b32 v{t+1}, s{S_TMP+4}", wr=R("v", t + 1)),
    ]
    for ins in seq:
        if ins == "PAIR":
            while s.load(g) > 0: g += 1
            a = salu("s_cmp_lg_u64 vcc, 0"); a.meta = "seq"; b = salu(f"s_cselect_b32 s{S_TMP}, 1, 0"); b.meta = "seq"
            s.put(g, a); s.put(g, b); g += 1
            continue
        g = s.place(ins, g, g + 8) + 1
    g += 1
    fw = I(f"ds_write_b32 v{t+1}, v{t}", "ds", rd=R("v", t, 2), tag=("flagw",))
    g = s.place(fw, g, g + 8)
    nsp = min(n for n in sp_gap if sp_gap[n] > g + 1)
    s.put(sp_gap[nsp] - 1, wait_ds(("flagw",)), last=True)
    g = sp_gap[nsp] + 1
    g = s.place(valu(f"v_mov_b32 v{t+2}, {FLAG_OFF}", wr=R("v", t + 2)), g, g + 8) + 2
    fr = I(f"ds_read_b128 {vr(t+5,4)}, v{t+2}", "ds", rd=R("v", t + 2), wr=R("v", t + 5, 4), tag=("flagr",))
    g = s.place(fr, g, g + 8) + 6
    s.put(g, wait_ds(("flagr",)), last=True)
    g += 1
    seq = [
        valu(f"v_or_b32 v{t+5}, v{t+5}, v{t+6}", rd=R("v", t + 5, 2), wr=R("v", t + 5)),
        valu(f"v_or_b32 v{t+7}, v{t+7}, v{t+8}", rd=R("v", t + 7, 2), wr=R("v", t + 7)),
        valu(f"v_or_b32 v{t+5}, v{t+5}, v{t+7}", rd=R("v", t + 5) | R("v", t + 7), wr=R("v", t + 5)),
    ]
    for ins in seq:
        g = s.place(ins, g, g + 8) + 1
    g = s.place(valu(f"v_readfirstlane_b32 s{S_TMP}, v{t+5}", rd=R("v", t + 5)), g + 1, g + 9) + 2
    g = s.place(salu(f"s_andn2_b32 s{S_TMP}, s{S_TMP}, s{S_RESTART}"), g, g + 8)
    br = salu("s_cbranch_scc1 L_fallback"); br.meta = None
    s.put(g, br, last=True)
    flag_done_gap = g
    first_store_lo = g + 1

    n_ep = [0]
    def ep_instrs(c, dp, qb):
        k = n_ep[0]; n_ep[0] += 1
        tb = V_S + 12 * (k % 2)
        acc = A_ACC[c % 2]
        A = acc + 12 * (2 * dp) + 4 * qb
        B = acc + 12 * (2 * dp + 1) + 4 * qb
        L = []
        for r in range(8):
            src = (A + r) if r < 4 else (B + r - 4)
            L.append(valu(f"v_accvgpr_read_b32 v{tb+r}, a{src}", rd=R("a", src), wr=R("v", tb + r)))
        for r in range(8):
            L.append(valu(f"v_mul_f32 v{tb+r}, v{V_NEGM+qb}, v{tb+r}", rd=R("v", tb + r) | R("v", V_NEGM + qb), wr=R("v", tb + r)))
        for p in range(4):
            L.append(valu(f"v_cvt_pk_bf16_f32 v{tb+8+p}, v{tb+2*p}, v{tb+2*p+1}", rd=R("v", tb + 2 * p, 2), wr=R("v", tb + 8 + p)))
        soff = ("0", f"s{S_8K}", f"s{S_16K}")[qb]
        L.append(I(f"buffer_store_dwordx4 {vr(tb+8,4)}, v{V_QO}, s[{S_OSRD}:{S_OSRD+3}], {soff} offen offset:{c*128+dp*64} {o.st_pol}",
                   "store", rd=R("v", tb + 8, 4) | R("v", V_QO), tag=("st", c, dp, qb)))
        return L
    def place_chain(L, lo, hi):
        g = lo
        for n, ins in enumerate(L):
            if ins.kind == "store":
                g += 1
            while g <= hi and not s.fits(g, ins):
                g += 1
            if g > hi:
                return g, L[n:]
            s.put(g, ins)
        return g + 1, []
    tail = []
    for c in range(4):
        jobs = [(dp, qb) for dp in range(2) for qb in range(3)]
        if c < 3:
            lo = max(last_acc[(c, db, qb)] for db in range(4) for qb in range(3)) + 5
            lo = max(lo, first_store_lo)
            hi_all = last_acc[(c + 1, 3, 2)] - 8 if c < 2 else max(last_acc[(3, db, qb)] for db in range(2) for qb in range(3))
            span = (hi_all - lo) // 6
            g = lo
            for j, (dp, qb) in enumerate(jobs):
                g, left = place_chain(ep_instrs(c, dp, qb), max(g, lo + j * span), hi_all + 4)
                assert not left, (c, dp, qb)
        else:
            g = max(last_acc[(3, db, qb)] for db in range(2) for qb in range(3)) + 5
            for dp, qb in jobs:
                L = ep_instrs(3, dp, qb)
                if not tail and dp == 0:
                    g, left = place_chain(L, g, N - 1)
                    tail += left
                else:
                    tail += L
    lin = s.linear()
    tl = [I("s_nop 7", "nop")] + tail
    return lin + tl, s


def max_chain(qb, src, t):
    o = []
    nm = V_NEGM + 4 * qb
    o.append(valu(f"v_max3_f32 v{t}, v{src}, v{src+1}, v{src+2}", rd=R("v", src, 3), wr=R("v", t)))
    o.append(valu(f"v_max_f32 v{t}, v{t}, v{src+3}", rd=R("v", t) | R("v", src + 3), wr=R("v", t)))
    o += cross_max(qb, t)
    for r in range(4):
        o.append(valu(f"v_add_f32 v{src+r}, v{V_NEGM+4*qb+r}, v{src+r}", rd=R("v", src + r) | R("v", V_NEGM + 4 * qb + r), wr=R("v", src + r)))
    return o


def cross_max(qb, t):
    o = []
    nm = V_NEGM + 4 * qb
    o.append(valu(f"v_mov_b32 v{t+1}, v{t}", rd=R("v", t), wr=R("v", t + 1)))
    o.append(I("s_nop 1", "nop2"))
    o.append(valu(f"v_permlane32_swap_b32 v{t}, v{t+1}", rd=R("v", t, 2), wr=R("v", t, 2), kind="perm"))
    o.append(I("s_nop 1", "nop2"))
    o.append(valu(f"v_max_f32 v{t}, v{t}, v{t+1}", rd=R("v", t, 2), wr=R("v", t)))
    o.append(valu(f"v_mov_b32 v{t+1}, v{t}", rd=R("v", t), wr=R("v", t + 1)))
    o.append(I("s_nop 1", "nop2"))
    o.append(valu(f"v_permlane16_swap_b32 v{t}, v{t+1}", rd=R("v", t, 2), wr=R("v", t, 2), kind="perm"))
    o.append(I("s_nop 1", "nop2"))
    o.append(valu(f"v_max_f32 v{t}, v{t}, v{t+1}", rd=R("v", t, 2), wr=R("v", t)))
    for r in range(4):
        o.append(valu(f"v_sub_f32 v{nm+r}, 0, v{t}", rd=R("v", t), wr=R("v", nm + r)))
    return o


def build_prologue(o):
    L = []
    A = L.append
    def S(t): A(salu(t))
    def V(t, rd=(), wr=()): A(valu(t, rd, wr))
    S("s_cmp_ge_u32 s2, 256")
    S("s_cbranch_scc1 L_end")
    S("s_load_dwordx4 s[4:7], s[0:1], 0")
    S("s_load_dwordx4 s[24:27], s[0:1], 16")
    if o.stamps:
        S("s_load_dwordx2 s[60:61], s[0:1], 40")
        S("s_memrealtime s[62:63]")
    V("v_lshrrev_b32 v19, 6, v0")
    V("v_and_b32 v20, 63, v0")
    S("s_and_b32 s46, s2, 7")
    S("s_lshr_b32 s47, s2, 3")
    V(f"v_readfirstlane_b32 s{S_W}, v19")
    S("s_and_b32 s48, s47, 1")
    S("s_lshr_b32 s47, s47, 1")
    S("s_lshl_b32 s46, s46, 4")
    S("s_add_u32 s46, s46, s47")
    S("s_lshl_b32 s47, s46, 1")
    S("s_add_u32 s47, s47, s48")
    S("s_mul_i32 s47, s47, 98304")
    S("s_lshl_b32 s46, s46, 18")
    V("v_lshrrev_b32 v21, 5, v20")
    V("v_and_b32 v22, 31, v20")
    V("v_xor_b32 v22, v22, v21")
    V("v_lshlrev_b32 v22, 4, v22")
    V("v_lshl_add_u32 v22, v21, 9, v22")
    S(f"s_lshl_b32 s49, s{S_W}, 12")
    S("s_add_u32 s49, s49, 96")
    V(f"v_add_u32 v{V_KD[0]}, s49, v22")
    V(f"v_subrev_u32 v{V_KD[1]}, 32, v{V_KD[0]}")
    V(f"v_subrev_u32 v{V_KD[2]}, 64, v{V_KD[0]}")
    V(f"v_add_u32 v{V_KD[3]}, -96, v{V_KD[0]}".replace("-96", "0xffffffa0"))
    S(f"s_mul_i32 s{S_WK}, s{S_W}, {4*KP}")
    S(f"s_mul_i32 s{S_WV}, s{S_W}, {4*VP}")
    V("v_and_b32 v21, 15, v20")
    V("v_lshrrev_b32 v23, 4, v20")
    V("v_lshlrev_b32 v24, 4, v23")
    V("v_lshl_add_u32 v24, v21, 9, v24")
    S(f"s_mul_i32 s50, s{S_W}, 24576")
    V(f"v_add_u32 v{V_QO}, s50, v24")
    S(f"s_mov_b32 s{S_8K}, 8192")
    S(f"s_mov_b32 s{S_16K}, 16384")
    if o.code_pf:
        S(f"s_getpc_b64 s[{S_PC}:{S_PC+1}]")
        A(I("L_pc:", "label"))
        S(f"s_sub_u32 s{S_CODE}, s{S_PC}, L_pc-{NAME}")
        S(f"s_subb_u32 s{S_CODE+1}, s{S_PC+1}, 0")
        S(f"s_mov_b32 s{S_CODE+2}, L_code_end-{NAME}")
        S(f"s_mov_b32 s{S_CODE+3}, 0x00020000")
        S("s_lshr_b32 s51, s2, 3")
        S("s_and_b32 s51, s51, 31")
        S("s_lshl_b32 s51, s51, 11")
        V("v_lshlrev_b32 v25, 3, v0")
        A(I(f"buffer_load_dwordx2 v[26:27], v25, s[{S_CODE}:{S_CODE+3}], s51 offen", "vmem", tag=("pf",)))
    S("s_waitcnt lgkmcnt(0)")
    S(f"s_add_u32 s{S_KSRD}, s6, s46")
    S(f"s_addc_u32 s{S_KSRD+1}, s7, 0")
    S(f"s_sub_u32 s{S_KSRD}, s{S_KSRD}, 96")
    S(f"s_subb_u32 s{S_KSRD+1}, s{S_KSRD+1}, 0")
    S(f"s_mov_b32 s{S_KSRD+2}, {262144+96}")
    S(f"s_mov_b32 s{S_KSRD+3}, 0x00020000")
    u0 = unit_dma(o, 0)
    L += u0
    S(f"s_add_u32 s{S_QSRD}, s4, s47")
    S(f"s_addc_u32 s{S_QSRD+1}, s5, 0")
    S(f"s_mov_b32 s{S_QSRD+2}, 98304")
    S(f"s_mov_b32 s{S_QSRD+3}, 0x00020000")
    qraw = V_P
    for qb in range(3):
        soff = ("0", f"s{S_8K}", f"s{S_16K}")[qb]
        for ks in range(8):
            r = qraw + 4 * (qb * 8 + ks)
            A(I(f"buffer_load_dwordx4 {vr(r,4)}, v{V_QO}, s[{S_QSRD}:{S_QSRD+3}], {soff} offen offset:{ks*64} {o.q_pol}", "vmem",
                rd=R("v", V_QO), wr=R("v", r, 4), tag=("q", qb, ks)))
    S(f"s_add_u32 s{S_VSRD}, s24, s46")
    S(f"s_addc_u32 s{S_VSRD+1}, s25, 0")
    S(f"s_mov_b32 s{S_VSRD+2}, 262144")
    S(f"s_mov_b32 s{S_VSRD+3}, 0x00020000")
    S(f"s_add_u32 s{S_OSRD}, s26, s47")
    S(f"s_addc_u32 s{S_OSRD+1}, s27, 0")
    S(f"s_mov_b32 s{S_OSRD+2}, 98304")
    S(f"s_mov_b32 s{S_OSRD+3}, 0x00020000")
    pu = o.pro_units
    for n in range(pu[0], pu[1]):
        L += unit_dma(o, n)
    V("v_bfe_u32 v22, v21, 2, 1")
    V("v_lshlrev_b32 v22, 3, v22")
    V("v_lshrrev_b32 v24, 3, v21")
    V("v_lshl_or_b32 v22, v24, 2, v22")
    V("v_and_b32 v24, 3, v21")
    V("v_or_b32 v22, v22, v24")
    V("v_and_b32 v24, 1, v22")
    V("v_lshrrev_b32 v22, 1, v22")
    V(f"v_mul_u32_u24 v22, {KP}, v22")
    V("v_lshl_add_u32 v22, v24, 9, v22")
    V("v_xor_b32 v24, v23, v24")
    V(f"v_lshl_add_u32 v{V_KR[0]}, v24, 4, v22")
    V(f"v_add_u32 v{V_KR[1]}, {3*SLOT}, v{V_KR[0]}")
    V(f"v_add_u32 v{V_KR[2]}, {6*SLOT}, v{V_KR[0]}")
    V("v_lshrrev_b32 v22, 3, v20")
    V("v_bfe_u32 v24, v22, 1, 1")
    V("v_lshlrev_b32 v24, 2, v24")
    V("v_and_b32 v21, 7, v20")
    V("v_xor_b32 v21, v21, v24")
    V("v_lshlrev_b32 v21, 4, v21")
    V("v_lshl_add_u32 v21, v22, 9, v21")
    S(f"s_lshl_b32 s49, s{S_W}, 14")
    V(f"v_add_u32 v{V_VD[0]}, s49, v21")
    for j in range(1, 4):
        V(f"v_add_u32 v{V_VD[j]}, {(4096-VP)*j}, v{V_VD[0]}")
    V("v_bfe_u32 v21, v20, 2, 2")
    V("v_lshrrev_b32 v22, 1, v23")
    V("v_lshl_add_u32 v22, v22, 2, v21")
    V("v_lshlrev_b32 v22, 7, v22")
    V("v_and_b32 v24, 1, v23")
    V(f"v_mul_u32_u24 v24, {VP}, v24")
    V("v_add_u32 v22, v22, v24")
    V("v_and_b32 v24, 3, v20")
    V("v_lshl_add_u32 v22, v24, 4, v22")
    V("v_bfe_u32 v21, v21, 1, 1")
    V(f"v_lshl_add_u32 v{V_VR[0][0]}, v21, 6, v22")
    V("v_xor_b32 v21, 1, v21")
    V(f"v_lshl_add_u32 v{V_VR[1][0]}, v21, 6, v22")
    for dp in range(2):
        V(f"v_add_u32 v{V_VR[dp][1]}, {3*SLOT}, v{V_VR[dp][0]}")
        V(f"v_add_u32 v{V_VR[dp][2]}, {6*SLOT}, v{V_VR[dp][0]}")
    S(f"s_mov_b32 s{S_C}, 0x3db8aa3b")
    S(f"s_mov_b32 s{S_C+1}, 0x3db8aa3b")
    S(f"s_mov_b32 s{S_TH}, {o.thresh if not o.force_fb else 0xbf800000:#x}")
    S(f"s_mov_b32 s{S_RESTART}, 0")
    S(f"s_mov_b32 s{S_MASK}, 0xffff0000")
    S(f"s_lshl_b32 s{S_TMP+4}, s{S_W}, 2")
    S(f"s_add_u32 s{S_TMP+4}, s{S_TMP+4}, {FLAG_OFF}")
    S("s_mov_b32 s52, 0x3f803f80")
    for r in range(4):
        V(f"v_accvgpr_write_b32 a{A_ONE+r}, s52", wr=R("a", A_ONE + r))
    A(wait_vm(("u", 0, 3)))
    A(I("s_barrier", "bar"))
    for F in range(8 + o.DK):
        A(k_read(F))
    if o.stamps:
        S("s_memrealtime s[64:65]")
    pend = None
    T = 160
    for qb in range(3):
        for ks in range(8):
            r = qraw + 4 * (qb * 8 + ks)
            tb = T + 16 * (ks % 2)
            A(wait_vm(("q", qb, ks)))
            for j in range(4):
                V(f"v_lshlrev_b32 v{tb+2*j}, 16, v{r+j}", rd=R("v", r + j), wr=R("v", tb + 2 * j))
                V(f"v_and_b32 v{tb+2*j+1}, s{S_MASK}, v{r+j}", rd=R("v", r + j), wr=R("v", tb + 2 * j + 1))
            for j in range(4):
                V(f"v_pk_mul_f32 {vr(tb+2*j,2)}, {vr(tb+2*j,2)}, s[{S_C}:{S_C+1}]", rd=R("v", tb + 2 * j, 2), wr=R("v", tb + 2 * j, 2))
            for j in range(4):
                V(f"v_cvt_pk_bf16_f32 v{tb+8+j}, v{tb+2*j}, v{tb+2*j+1}", rd=R("v", tb + 2 * j, 2), wr=R("v", tb + 8 + j))
            for j in range(4):
                V(f"v_accvgpr_write_b32 a{A_Q+4*(qb*8+ks)+j}, v{tb+8+j}", rd=R("v", tb + 8 + j), wr=R("a", A_Q + 4 * (qb * 8 + ks) + j))
            if pend is not None:
                L += pend
            m = mfma("v", S_reg(0, qb), "a", A_KF + 4 * ks, "a", A_Q + 4 * (qb * 8 + ks), c=("zero" if ks == 0 else None))
            pend = ([wait_ds(("kf", ks))] if qb == 0 else []) + [m]
            if ks == 1 and qb > 0:
                L += max_chain(qb - 1, S_reg(0, qb - 1), 24)
        for n in range(pu[1 + qb], pu[2 + qb]):
            L += unit_dma(o, n)
    A(I("s_nop 1", "nop2"))
    L += pend
    A(I("s_nop 7", "nop"))
    L += max_chain(2, S_reg(0, 2), 24)
    A(wait_ds(("kf", 9)))
    if o.stamps:
        S("s_memrealtime s[66:67]")
    A(I("L_join:", "label"))
    return L


def build_fallback(o):
    t = []
    A = t.append
    A("L_fallback:")
    A("    s_waitcnt vmcnt(0) lgkmcnt(0)")
    A("    s_barrier")
    vm = (19, 20, 21)
    for qb in range(3):
        A(f"    v_mov_b32 v{vm[qb]}, 0xff800000")
    A("    s_mov_b32 s53, 0")
    A("L_fb_loop:")
    A(f"    s_mov_b32 m0, s{S_WK}")
    A(f"    s_lshl_b32 s{S_OFF}, s53, 14")
    for j in range(4):
        A(f"    buffer_load_dwordx4 v{V_KD[j]}, s[{S_KSRD}:{S_KSRD+3}], s{S_OFF} offen offset:{j*KP} lds")
    A("    s_waitcnt vmcnt(0)")
    A("    s_barrier")
    for kb in range(2):
        for ks in range(8):
            A(f"    ds_read_b128 {ar(A_KF+4*ks,4)}, v{V_KR[0]} offset:{kb*8*KP+ks*64}")
        A("    s_waitcnt lgkmcnt(0)")
        for ks in range(8):
            for qb in range(3):
                c = "0" if ks == 0 else vr(V_S + 4 * qb, 4)
                A(f"    v_mfma_f32_16x16x32_bf16 {vr(V_S+4*qb,4)}, {ar(A_KF+4*ks,4)}, {ar(A_Q+4*(qb*8+ks),4)}, {c}")
        A("    s_nop 7")
        A("    s_nop 7")
        for qb in range(3):
            b = V_S + 4 * qb
            A(f"    v_max3_f32 v{vm[qb]}, v{vm[qb]}, v{b}, v{b+1}")
            A(f"    v_max3_f32 v{vm[qb]}, v{vm[qb]}, v{b+2}, v{b+3}")
        A("    s_nop 3")
    A("    s_barrier")
    A("    s_add_u32 s53, s53, 1")
    A("    s_cmp_lt_u32 s53, 16")
    A("    s_cbranch_scc1 L_fb_loop")
    for qb in range(3):
        A(f"    v_mov_b32 v24, v{vm[qb]}")
        for ins in cross_max(qb, 24):
            A("    " + ins.text)
    for n in range(8):
        for ins in unit_dma(o, n):
            A("    " + ins.text)
    A("    s_waitcnt vmcnt(0)")
    A("    s_barrier")
    for F in range(8 + o.DK):
        A("    " + k_read(F).text)
        if F == 7:
            A("    s_waitcnt lgkmcnt(0)")
    A("    s_waitcnt lgkmcnt(0)")
    for ks in range(8):
        for qb in range(3):
            A("    " + mfma("v", S_reg(0, qb), "a", A_KF + 4 * ks, "a", A_Q + 4 * (qb * 8 + ks), c=("zero" if ks == 0 else None)).text)
    A("    s_nop 7")
    A("    s_nop 7")
    for qb in range(3):
        for r in range(4):
            A(f"    v_add_f32 v{S_reg(0,qb)+r}, v{V_NEGM+4*qb+r}, v{S_reg(0,qb)+r}")
    A(f"    s_mov_b32 s{S_RESTART}, 1")
    A("    s_branch L_join")
    return t


def resolve(lin):
    ds, vm = [], []
    out = []
    for ins in lin:
        if ins.kind == "wait":
            cls, tag = ins.wait
            q = ds if cls == "ds" else vm
            idx = max(i for i, t in enumerate(q) if t == tag)
            n = len(q) - 1 - idx
            lim = 15 if cls == "ds" else 63
            n = min(n, lim)
            ins.text = f"s_waitcnt {'lgkmcnt' if cls == 'ds' else 'vmcnt'}({n})"
        elif ins.kind == "ds":
            ds.append(ins.tag)
        elif ins.kind in ("dma", "store", "vmem"):
            vm.append(ins.tag)
        out.append(ins)
    return out


def states(ins):
    if ins.kind in ("label", "raw"):
        return 0
    m = re.match(r"s_nop (\d+)", ins.text or "")
    return int(m.group(1)) + 1 if m else 1


def hazard_check(lin):
    errs = []
    VAL = ("valu", "trans", "perm")
    last_mfma_wr, last_valu_wr, last_trans_wr, last_srcc, last_store_rd = {}, {}, {}, {}, {}
    pos = 0
    last_m0 = -10
    pending_ld = {}
    for ins in lin:
        def need(d, reg, n, what):
            if reg in d and pos - d[reg] - 1 < n:
                errs.append(f"{what}: {ins.text} reg {reg} dist {pos - d[reg] - 1} < {n}")
        if ins.kind == "mfma":
            for r in ins.rd:
                need(last_valu_wr, r, 2, "valu->mfma")
            for r in ins.rd - ins.srcc:
                need(last_mfma_wr, r, 8, "mfma->mfma A/B")
            for r in ins.srcc:
                if r in last_mfma_wr and ins.srcc != ins.wr:
                    need(last_mfma_wr, r, 6, "mfma->mfma C overlap")
            if ins.srcc and ins.srcc != ins.wr:
                pass
        elif ins.kind in VAL:
            for r in ins.rd | ins.wr:
                need(last_mfma_wr, r, 8, "mfma->valu")
            for r in ins.rd:
                need(last_trans_wr, r, 1, "trans->valu")
            for r in ins.wr:
                need(last_srcc, r, 3, "mfma C war")
                need(last_store_rd, r, 2, "store war")
            if ins.kind == "perm":
                for r in ins.rd:
                    need(last_valu_wr, r, 2, "valu->perm")
            if "readfirstlane" in ins.text:
                for r in ins.rd:
                    need(last_valu_wr, r, 1, "valu->readfirstlane")
        elif ins.kind in ("ds", "dma", "store", "vmem"):
            for r in ins.rd | ins.wr:
                need(last_mfma_wr, r, 8, "mfma->mem")
            if ins.kind == "dma" and pos - last_m0 - 1 < 1:
                errs.append(f"m0 hazard {ins.text}")
        if ins.text and re.match(r"s_\w+ m0,", ins.text):
            last_m0 = pos
        if ins.kind == "mfma":
            for r in ins.wr: last_mfma_wr[r] = pos
            for r in ins.srcc: last_srcc[r] = pos
        elif ins.kind in VAL:
            for r in ins.wr:
                last_valu_wr[r] = pos
                last_mfma_wr.pop(r, None)
                if ins.kind == "trans": last_trans_wr[r] = pos
                else: last_trans_wr.pop(r, None)
        elif ins.kind == "store":
            for r in ins.rd: last_store_rd[r] = pos
        pos += states(ins)
    return errs


def dataflow_check(lin):
    errs = []
    ds, vm = [], []
    pend = {}
    done = {"ds": -1, "vm": -1}
    for ins in lin:
        if ins.kind == "wait":
            m = re.match(r"s_waitcnt (\w+)\((\d+)\)", ins.text)
            cls = "ds" if m.group(1) == "lgkmcnt" else "vm"
            q = ds if cls == "ds" else vm
            done[cls] = max(done[cls], len(q) - 1 - int(m.group(2)))
            continue
        if ins.text and ins.text.startswith("s_waitcnt"):
            if "lgkmcnt(0)" in ins.text: done["ds"] = len(ds) - 1
            if "vmcnt(0)" in ins.text: done["vm"] = len(vm) - 1
        for r in ins.rd | (ins.wr if ins.kind not in ("ds", "vmem") else set()):
            if r in pend:
                cls, idx = pend[r]
                if idx > done[cls]:
                    errs.append(f"unwaited load reg {r} used by {ins.text}")
        if ins.kind == "ds":
            ds.append(ins.tag)
            for r in ins.wr: pend[r] = ("ds", len(ds) - 1)
        elif ins.kind in ("dma", "store", "vmem"):
            vm.append(ins.tag)
            for r in ins.wr: pend[r] = ("vm", len(vm) - 1)
    return errs


def generate(o):
    pro = build_prologue(o)
    main, s = build_main(o)
    lin = resolve(pro + main)
    errs = hazard_check(lin) + dataflow_check(lin)
    txt = []
    txt.append(f"; @launch grid=(256,1,1) block=(256,1,1) lds={LDS_BYTES}")
    txt.append('.amdgcn_target "amdgcn-amd-amdhsa--gfx950"')
    txt.append(".text")
    txt.append(f".globl {NAME}")
    txt.append(".p2align 8")
    txt.append(f".type {NAME},@function")
    txt.append(f"{NAME}:")
    for ins in lin:
        txt.append(ins.text if ins.kind == "label" else "    " + ins.text)
    if o.stamps:
        txt += ["    s_memrealtime s[68:69]", "    s_waitcnt vmcnt(0)", "    s_memrealtime s[70:71]", "    s_waitcnt lgkmcnt(0)",
                "    s_mov_b32 s72, s60", "    s_mov_b32 s73, s61", "    s_mov_b32 s74, 0x100000", "    s_mov_b32 s75, 0x20000",
                "    v_mov_b32 v19, s62", "    v_mov_b32 v20, s64", "    v_mov_b32 v21, s66", "    v_mov_b32 v22, s68", "    v_mov_b32 v23, s70",
                f"    s_lshl_b32 s76, s2, 2", f"    s_add_u32 s76, s76, s{S_W}", "    s_lshl_b32 s76, s76, 5", "    v_mov_b32 v24, s76",
                "    s_mov_b64 exec, 1",
                "    buffer_store_dwordx4 v[20:23], v24, s[72:75], 0 offen offset:4",
                "    buffer_store_dword v19, v24, s[72:75], 0 offen",
                "    s_waitcnt vmcnt(0)"]
    txt.append("L_end:")
    txt.append("    s_endpgm")
    txt += build_fallback(o)
    txt.append("L_code_end:")
    txt.append("    s_endpgm")
    txt.append('.section .rodata,"a"')
    txt.append(".p2align 6")
    txt.append(f".amdhsa_kernel {NAME}")
    txt += ["  .amdhsa_next_free_vgpr 512", "  .amdhsa_next_free_sgpr 96", "  .amdhsa_accum_offset 256",
            "  .amdhsa_group_segment_fixed_size 0", "  .amdhsa_kernarg_size 48", "  .amdhsa_user_sgpr_count 2",
            "  .amdhsa_user_sgpr_kernarg_segment_ptr 1", "  .amdhsa_system_sgpr_workgroup_id_x 1",
            "  .amdhsa_float_denorm_mode_32 3", ".end_amdhsa_kernel"]
    return "\n".join(txt) + "\n", errs, s, lin


def stats(s):
    over = [(i, s.load(i)) for i in range(len(s.M)) if s.load(i) > 8]
    tot = sum(max(16, 8 + s.load(i)) for i in range(len(s.M)))
    return f"mfma={len(s.M)} overfull gaps={len(over)} est cycles={tot} forced={s.over}"


def make(**kw):
    o = Opt()
    for k, v in kw.items():
        assert hasattr(o, k), k
        setattr(o, k, v)
    txt, errs, s, lin = generate(o)
    return txt, errs, s, lin


if __name__ == "__main__":
    kw = {}
    out = "standalone__gqa_softmax__near_ridge.s"
    for a in sys.argv[1:]:
        if a.startswith("-o"):
            out = a[2:]
        else:
            k, v = a.split("=")
            kw[k] = eval(v)
    txt, errs, s, lin = make(**kw)
    for e in errs[:40]:
        print("HAZARD", e)
    print(len(errs), "hazards;", stats(s), "; bytes of text", len(txt))
    open(out, "w").write(txt)
```

```python
import sys
from gen import *
kw = {}
lo, hi = int(sys.argv[1]), int(sys.argv[2])
for a in sys.argv[3:]:
    k, v = a.split("="); kw[k] = eval(v)
txt, errs, s, lin = make(**kw)
for i in range(lo, hi):
    m = s.M[i].text.replace("v_mfma_f32_16x16x32_bf16 ", "M ")
    print(f"{i:4d} {m:48s} [{s.load(i):2d}] " + " | ".join((x.text or '').replace('buffer_load_dwordx4','DMA').replace('v_cvt_pk_bf16_f32','cvt').replace('ds_read_b128','dsr').replace('ds_read_b64_tr_b16','dstr')[:44] for _, x in s.G[i]))
```

```python
import sys, re

NAME = "standalone__gqa_softmax__near_ridge_kernel"

class Opt:
    ld_pol = "nt"
    q_pol = "nt"
    st_pol = "nt"
    code_pf = True
    stamps = False
    thresh = 0x47800000
    force_fb = False
    nostore = False
    st_small = False
    no_dma2 = False
    lds_st = True
    pair_st = True
    DK = 6
    DV = 6
    nq0 = 12
    touch = True
    pro_units = 4
    pk_scale = True

SLOT = 16896
NSLOT = 9
KP = 1056
VP = 1032
FLAG_OFF = SLOT * NSLOT
SCR_OFF = FLAG_OFF + 64
SCR_PITCH = 144
SCR_WAVE = 16 * SCR_PITCH
LDS_BYTES = SCR_OFF + 4 * SCR_WAVE

V_QO = 1
V_KR = (2, 3, 4)
V_KD = (5, 6, 7, 8)
V_VD = (9, 10, 11, 12)
V_VR = ((13, 14, 15), (16, 17, 18))
V_T = 19
V_SW, V_SR, V_O = 22, 23, 0
V_NEGM = 28
V_S = 40
V_P = 64
A_Q = 0
A_VF = 96
A_L = 128
A_ONE = 140
A_KF = 144
A_ACC = (144, 192)
S_W = 3
S_QSRD, S_KSRD, S_VSRD, S_OSRD = 8, 12, 16, 20
S_WK, S_WV, S_OFF = 28, 29, 30
S_8K, S_16K = 31, 32
S_C = 34
S_TH = 33
S_RESTART = 36
S_MASK = 37
S_CODE = 40
S_PC = 44
S_TMP = 46
S_QB = (54, 55, 56, 57, 58, 59)


def vr(a, n=1):
    return f"v{a}" if n == 1 else f"v[{a}:{a+n-1}]"
def ar(a, n=1):
    return f"a{a}" if n == 1 else f"a[{a}:{a+n-1}]"
def R(kind, a, n=1):
    return {(kind, a + k) for k in range(n)}


class I:
    __slots__ = ("text", "kind", "rd", "wr", "srcc", "tag", "wait", "meta")
    def __init__(self, text, kind, rd=(), wr=(), srcc=(), tag=None, wait=None, meta=None):
        self.text, self.kind = text, kind
        self.rd, self.wr, self.srcc = set(rd), set(wr), set(srcc)
        self.tag, self.wait, self.meta = tag, wait, meta
    @property
    def cost(self):
        return {"mfma": 8, "trans": 8, "dma": 8, "store": 8, "label": 0, "raw": 0}.get(self.kind, 4)


def mfma(dk, d, ak, a, bk, b, c=None, meta=None):
    f = {"v": vr, "a": ar}
    if c is None:
        ctext, srcc = f[dk](d, 4), R(dk, d, 4)
    elif c == "zero":
        ctext, srcc = "0", set()
    else:
        ctext, srcc = f[dk](c, 4), R(dk, c, 4)
    t = f"v_mfma_f32_16x16x32_bf16 {f[dk](d,4)}, {f[ak](a,4)}, {f[bk](b,4)}, {ctext}"
    return I(t, "mfma", rd=R(ak, a, 4) | R(bk, b, 4) | srcc, wr=R(dk, d, 4), srcc=srcc, meta=meta)


def valu(text, rd=(), wr=(), kind="valu"):
    return I(text, kind, rd=rd, wr=wr)
def salu(text):
    return I(text, "salu")
def wait_ds(tag):
    return I(None, "wait", wait=("ds", tag))
def wait_vm(tag):
    return I(None, "wait", wait=("vm", tag))
def raw(text):
    return I(text, "raw")


def unit_dma(o, n):
    slot = n % NSLOT
    out = []
    if n < 16:
        out.append(salu(f"s_add_u32 m0, s{S_WK}, {slot*SLOT}"))
        out.append(salu(f"s_mov_b32 s{S_OFF}, {n*16384}"))
        for j in range(4):
            out.append(I(f"buffer_load_dwordx4 v{V_KD[j]}, s[{S_KSRD}:{S_KSRD+3}], s{S_OFF} offen offset:{j*KP} {o.ld_pol} lds",
                         "dma", rd=R("v", V_KD[j]), tag=("u", n, j)))
    else:
        c, kr = (n - 16) // 4, (n - 16) % 4
        out.append(salu(f"s_add_u32 m0, s{S_WV}, {slot*SLOT}"))
        out.append(salu(f"s_mov_b32 s{S_OFF}, {kr*65536 + c*128}"))
        for j in range(4):
            out.append(I(f"buffer_load_dwordx4 v{V_VD[j]}, s[{S_VSRD}:{S_VSRD+3}], s{S_OFF} offen offset:{j*VP} {o.ld_pol} lds",
                         "dma", rd=R("v", V_VD[j]), tag=("u", n, j)))
    return out


def k_read(F):
    hs, ks = F // 8, F % 8
    u, kb = hs // 2, hs % 2
    slot = u % NSLOT
    off = (slot % 3) * SLOT + kb * 8 * KP + ks * 64
    dst = A_KF + 4 * (F % 16)
    return I(f"ds_read_b128 {ar(dst,4)}, v{V_KR[slot//3]} offset:{off}", "ds",
             rd=R("v", V_KR[slot // 3]), wr=R("a", dst, 4), tag=("kf", F))


def v_frag_info(G, order):
    st, f = G // 16, G % 16
    kc, db = order(st, f)
    return st, kc, db


def v_order(st, f):
    return f // 4, f % 4


def v_reads(G):
    st, kc, db = v_frag_info(G, v_order)
    n = 16 + st
    slot = n % NSLOT
    dp, h = db // 2, db % 2
    dst = A_VF + 4 * (G % 8)
    out = []
    for kb in range(2):
        off = (slot % 3) * SLOT + (4 * kc + 2 * kb) * VP + 8 * h
        a = V_VR[dp][slot // 3]
        out.append(I(f"ds_read_b64_tr_b16 {ar(dst+2*kb,2)}, v{a} offset:{off}", "ds",
                     rd=R("v", a), wr=R("a", dst + 2 * kb, 2), tag=("vf", G, kb)))
    return out


def P_reg(u, qb):
    return V_P + 12 * u + 4 * qb
def S_reg(hs, qb):
    return V_S + 12 * (hs % 2) + 4 * qb


class Sched:
    def __init__(self):
        self.M = []
        self.G = []
        self.over = 0
    def add(self, m):
        self.M.append(m); self.G.append([])
        return len(self.M) - 1
    def load(self, g):
        return sum(i.cost for _, i in self.G[g])
    def fits(self, g, ins):
        cur = self.G[g]
        if self.load(g) + ins.cost > 8:
            return False
        if ins.kind in ("ds", "dma", "store"):
            pass
        return True
    def put(self, g, ins, last=False):
        self.G[g].append((1 if last else 0, ins))
    def place(self, ins, lo, hi, last=False):
        hi = min(hi, len(self.M) - 1)
        lo = min(lo, hi)
        for g in range(lo, hi + 1):
            if self.fits(g, ins) and not any(k == 1 and False for k, _ in self.G[g]):
                self.put(g, ins, last); return g
        g = min(range(lo, hi + 1), key=lambda x: self.load(x))
        self.over += 1
        self.put(g, ins, last); return g
    def linear(self):
        out = []
        rank = {"ds": 0, "dma": 0, "store": 0, "salu": 1, "wait": 1, "bar": 1, "valu": 2, "trans": 2}
        for m, gap in zip(self.M, self.G):
            out.append(m)
            body = [x for x in gap]
            if any(i.meta == "seq" for _, i in body):
                body.sort(key=lambda t: t[0])
            else:
                body.sort(key=lambda t: (t[0], rank[t[1].kind]))
            out += [i for _, i in body]
        return out


def build_main(o):
    s = Sched()
    hs_first = {}
    qk_idx = {}
    one = A_ONE
    sum_idx = {}
    for hs in range(1, 32):
        if hs % 2 == 1 and hs >= 3:
            u = (hs - 3) // 2
            for qb in range(3):
                sum_idx[(u, qb)] = s.add(mfma("a", A_L + 4 * qb, "a", one, "v", P_reg(u, qb), c=("zero" if u == 0 else None)))
        for ks in range(8):
            F = hs * 8 + ks
            for qb in range(3):
                m = mfma("v", S_reg(hs, qb), "a", A_KF + 4 * (F % 16), "a", A_Q + 4 * (qb * 8 + ks),
                         c=(V_NEGM + 4 * qb if ks == 0 else None))
                qk_idx[(hs, 3 * ks + qb)] = s.add(m)
    pv_idx = {}
    last_acc = {}
    for G in range(256):
        st, kc, db = v_frag_info(G, v_order)
        c, kr = st // 4, st % 4
        u = 4 * kr + kc
        if G == 14:
            for qb in range(3):
                sum_idx[(15, qb)] = s.add(mfma("a", A_L + 4 * qb, "a", one, "v", P_reg(15, qb)))
        for qb in range(3):
            d = A_ACC[c % 2] + 12 * db + 4 * qb
            first = (u == 0) if st != 15 else (u == 0)
            m = mfma("a", d, "a", A_VF + 4 * (G % 8), "v", P_reg(u, qb), c=("zero" if u == 0 else None))
            pv_idx[(G, qb)] = s.add(m)
            last_acc[(c, db, qb)] = pv_idx[(G, qb)]
    N = len(s.M)
    if o.stamps and o.stamps not in ("pro", "sp"):
        for n, gi in ((3, qk_idx[(16, 1)]), (4, pv_idx[(0, 0)]), (5, pv_idx[(64, 0)]), (6, pv_idx[(128, 0)])):
            st_ = salu(f"s_memtime s[{62+2*n}:{63+2*n}]"); s.put(gi, st_, last=True)

    DK, DV = o.DK, o.DV
    assert DK == 6
    def fg(hs, k, g):
        return qk_idx[(hs, 6 * k + g)]
    sp_gap = {}
    def put_sp(n, g):
        sp_gap[n] = g
        def q(ins):
            ins.meta = "seq"; s.put(g, ins)
        if o.stamps == "sp":
            pa, pb = 62 + 4 * (n % 2), 64 + 4 * (n % 2)
            qa, qb_ = 62 + 4 * ((n + 1) % 2), 64 + 4 * ((n + 1) % 2)
            if n > 1:
                q(valu(f"v_writelane_b32 v0, s{qa}, {n-1}")); q(valu(f"v_writelane_b32 v0, s{qb_}, {32+n-1}"))
            q(salu(f"s_memrealtime s[{pa}:{pa+1}]"))
        q(wait_vm(("u", n, 3)))
        q(I("s_barrier", "bar"))
        if o.stamps == "sp":
            q(salu(f"s_memrealtime s[{pb}:{pb+1}]"))
    for hs in range(1, 32):
        for k in range(4):
            F0 = hs * 8 + 2 * k
            for j in range(2):
                F = F0 + DK + j
                if F < 256:
                    s.put(fg(hs, k, 0), k_read(F))
                else:
                    for r in v_reads(F - 256):
                        s.put(fg(hs, k, 0), r)
            if not (hs == 31 and k == 3):
                s.put(fg(hs, k, 5), wait_ds(("kf", F0 + 3)), last=True)
        if hs % 2 == 1:
            put_sp((hs + 1) // 2, fg(hs, 0, 3))
    for G in range(DV, 256):
        g0 = pv_idx[(G - DV, 0)]
        if G % 16 == 0:
            put_sp(16 + G // 16, g0 - 2)
        for r in v_reads(G):
            s.put(g0, r)
    for G in range(0, 256, 2):
        g = pv_idx[(G, 0)] - 1
        s.put(g, wait_ds(("vf", G + 1, 1)), last=True)

    plan = {}
    nxt = o.pro_units
    for n in range(1, 25):
        want = min(n + 7, 31)
        k = min(2, want - nxt + 1)
        plan[n] = list(range(nxt, nxt + k)); nxt += k
    assert nxt == 32, nxt
    for n in range(1, 25):
        units = plan[n]
        if not units:
            continue
        if n <= 16:
            hs = 2 * n - 1
            def setup(ins, first):
                if first and hs >= 3:
                    u = (hs - 3) // 2
                    s.put(sum_idx[(u, 0)], ins[0]); s.put(sum_idx[(u, 0)], ins[1])
                elif first:
                    s.put(fg(hs, 0, 0), ins[0]); s.put(fg(hs, 0, 1), ins[1])
            def nxt_pos(k, g):
                return fg(hs + 1, k, g) if hs + 1 <= 31 else pv_idx[(2 * k, 1)]
            if len(units) == 1:
                ins = unit_dma(o, units[0]); setup(ins, True)
                for d, gi in zip(ins[2:], (fg(hs, 1, 3), fg(hs, 2, 3), nxt_pos(0, 3), nxt_pos(2, 3) if hs + 1 <= 31 else pv_idx[(2, 1)])):
                    s.put(gi, d)
            else:
                a = unit_dma(o, units[0]); b = unit_dma(o, units[1]); setup(a, True)
                for d, gi in zip(a[2:], (fg(hs, 1, 1), fg(hs, 1, 3), fg(hs, 2, 1), fg(hs, 2, 3))):
                    s.put(gi, d)
                s.put(fg(hs, 3, 1), b[0]); s.put(fg(hs, 3, 1), b[1])
                for d, gi in zip(b[2:], (fg(hs, 3, 4), fg(hs + 1, 0, 3), fg(hs + 1, 1, 1), fg(hs + 1, 2, 3))):
                    s.put(gi, d)
        else:
            assert len(units) == 1
            ins = unit_dma(o, units[0])
            lo = sp_gap[n] + 1
            hi = (sp_gap[n + 1] - 1)
            g0 = s.place(ins[0], lo, hi)
            g1 = s.place(ins[1], g0, hi)
            g = max(g0, g1) + 1
            for d in ins[2:]:
                g = s.place(d, g, hi) + 4

    def exp_i(hs, qb, r):
        b = S_reg(hs, qb) + r
        return valu(f"v_exp_f32 v{b}, v{b}", rd=R("v", b), wr=R("v", b), kind="trans")
    def cvt_i(hs, qb, p):
        b = S_reg(hs, qb) + 2 * p
        dst = P_reg(hs // 2, qb) + 2 * (hs % 2) + p
        return valu(f"v_cvt_pk_bf16_f32 v{dst}, v{b}, v{b+1}", rd=R("v", b, 2), wr=R("v", dst))
    for hs in range(0, 31):
        h = hs + 1
        for e in range(12):
            s.put(fg(h, e // 3, (1, 2, 4)[e % 3]), exp_i(hs, e // 4, e % 4))
        if h % 2 == 0:
            pos = {(0, 0): (0, 5), (0, 1): (1, 3), (1, 0): (1, 5), (1, 1): (2, 5), (2, 0): (3, 3), (2, 1): (3, 5)}
        else:
            pos = {(0, 0): (0, 5), (0, 1): (1, 5), (1, 0): (2, 5), (1, 1): (3, 3), (2, 0): (3, 3), (2, 1): (3, 5)}
        for (qb, p), (k, g) in pos.items():
            s.put(fg(h, k, g), cvt_i(hs, qb, p))
    g = qk_idx[(31, 23)] + 2
    hi = sum_idx[(15, 0)] - 2
    for qb in range(3):
        eg = []
        for r in range(4):
            ge = s.place(exp_i(31, qb, r), g, hi); eg.append(ge); g = ge + 1
        for p in range(2):
            s.place(cvt_i(31, qb, p), eg[2 * p + 1] + 1, hi)

    gl = sum_idx[(15, 2)] + 5
    t = V_T
    chk = []
    for qb in range(3):
        chk.append(valu(f"v_accvgpr_read_b32 v{V_NEGM+qb}, a{A_L+4*qb}", rd=R("a", A_L + 4 * qb), wr=R("v", V_NEGM + qb)))
    chk.append(valu(f"v_cmp_nge_f32 vcc, s{S_TH}, v{V_NEGM}", rd=R("v", V_NEGM)))
    chk.append(valu(f"v_cmp_nge_f32 s[{S_TMP}:{S_TMP+1}], s{S_TH}, v{V_NEGM+1}", rd=R("v", V_NEGM + 1)))
    chk.append(valu(f"v_cmp_nge_f32 s[{S_TMP+2}:{S_TMP+3}], s{S_TH}, v{V_NEGM+2}", rd=R("v", V_NEGM + 2)))
    g = gl
    for ins in chk:
        g = s.place(ins, g, g + 8) + 1
    seq = [
        valu(f"v_rcp_f32 v{V_NEGM}, v{V_NEGM}", rd=R("v", V_NEGM), wr=R("v", V_NEGM), kind="trans"),
        valu(f"v_rcp_f32 v{V_NEGM+1}, v{V_NEGM+1}", rd=R("v", V_NEGM + 1), wr=R("v", V_NEGM + 1), kind="trans"),
        valu(f"v_rcp_f32 v{V_NEGM+2}, v{V_NEGM+2}", rd=R("v", V_NEGM + 2), wr=R("v", V_NEGM + 2), kind="trans"),
        salu(f"s_or_b64 vcc, vcc, s[{S_TMP}:{S_TMP+1}]"),
        salu(f"s_or_b64 vcc, vcc, s[{S_TMP+2}:{S_TMP+3}]"),
        "PAIR",
        valu(f"v_mov_b32 v{t}, s{S_TMP}", wr=R("v", t)),
        valu(f"v_mov_b32 v{t+1}, s{S_TMP+4}", wr=R("v", t + 1)),
    ]
    for ins in seq:
        if ins == "PAIR":
            while s.load(g) > 0: g += 1
            a = salu("s_cmp_lg_u64 vcc, 0"); a.meta = "seq"; b = salu(f"s_cselect_b32 s{S_TMP}, 1, 0"); b.meta = "seq"
            s.put(g, a); s.put(g, b); g += 1
            continue
        g = s.place(ins, g, g + 8) + 1
    g += 1
    fw = I(f"ds_write_b32 v{t+1}, v{t}", "ds", rd=R("v", t, 2), tag=("flagw",))
    g = s.place(fw, g, g + 8)
    nsp = min(n for n in sp_gap if sp_gap[n] > g + 1)
    s.put(sp_gap[nsp] - 1, wait_ds(("flagw",)), last=True)
    g = sp_gap[nsp] + 1
    g = s.place(valu(f"v_mov_b32 v{t+2}, {FLAG_OFF}", wr=R("v", t + 2)), g, g + 8) + 2
    fr = I(f"ds_read_b128 {vr(t+5,4)}, v{t+2}", "ds", rd=R("v", t + 2), wr=R("v", t + 5, 4), tag=("flagr",))
    g = s.place(fr, g, g + 8) + 6
    s.put(g, wait_ds(("flagr",)), last=True)
    g += 1
    seq = [
        valu(f"v_or_b32 v{t+5}, v{t+5}, v{t+6}", rd=R("v", t + 5, 2), wr=R("v", t + 5)),
        valu(f"v_or_b32 v{t+7}, v{t+7}, v{t+8}", rd=R("v", t + 7, 2), wr=R("v", t + 7)),
        valu(f"v_or_b32 v{t+5}, v{t+5}, v{t+7}", rd=R("v", t + 5) | R("v", t + 7), wr=R("v", t + 5)),
    ]
    for ins in seq:
        g = s.place(ins, g, g + 8) + 1
    g = s.place(valu(f"v_readfirstlane_b32 s{S_TMP}, v{t+5}", rd=R("v", t + 5)), g + 1, g + 9) + 2
    g = s.place(salu(f"s_andn2_b32 s{S_TMP}, s{S_TMP}, s{S_RESTART}"), g, g + 8)
    br = salu("s_cbranch_scc1 L_fallback"); br.meta = None
    s.put(g, br, last=True)
    flag_done_gap = g
    first_store_lo = g + 1

    def job(c, qb, base):
        acc = A_ACC[c % 2]
        pol = o.st_pol if isinstance(o.st_pol, str) else o.st_pol[c]
        k = (c, qb)
        L = []
        for dp in range(2):
            A_ = acc + 12 * (2 * dp) + 4 * qb
            B_ = acc + 12 * (2 * dp + 1) + 4 * qb
            tb = base + 8 * dp
            for r in range(8):
                src_ = (A_ + r) if r < 4 else (B_ + r - 4)
                L.append(valu(f"v_accvgpr_read_b32 v{tb+r}, a{src_}", rd=R("a", src_), wr=R("v", tb + r)))
            for r in range(8):
                L.append(valu(f"v_mul_f32 v{tb+r}, v{V_NEGM+qb}, v{tb+r}", rd=R("v", tb + r) | R("v", V_NEGM + qb), wr=R("v", tb + r)))
            for p in range(4):
                L.append(valu(f"v_cvt_pk_bf16_f32 v{base+16+4*dp+p}, v{tb+2*p}, v{tb+2*p+1}", rd=R("v", tb + 2 * p, 2), wr=R("v", base + 16 + 4 * dp + p)))
        X, Y, RA, RB = base + 16, base + 20, base, base + 8
        M = [I(f"ds_write_b128 v{V_SW}, {vr(X,4)}", "ds", rd=R("v", V_SW) | R("v", X, 4), tag=("sw", k, 0)),
             I(f"ds_write_b128 v{V_SW}, {vr(Y,4)} offset:64", "ds", rd=R("v", V_SW) | R("v", Y, 4), tag=("sw", k, 1)),
             I(f"ds_read_b128 {vr(RA,4)}, v{V_SR}", "ds", rd=R("v", V_SR), wr=R("v", RA, 4), tag=("sr", k, 0)),
             I(f"ds_read_b128 {vr(RB,4)}, v{V_SR} offset:{8*SCR_PITCH}", "ds", rd=R("v", V_SR), wr=R("v", RB, 4), tag=("sr", k, 1))]
        W = wait_ds(("sr", k, 1))
        ST = []
        if o.nostore is False or (o.nostore is not True and c not in o.nostore):
            for h, r in ((0, RA), (1, RB)):
                ST.append(I(f"buffer_store_dwordx4 {vr(r,4)}, v{V_O}, s[{S_OSRD}:{S_OSRD+3}], s{S_QB[2*qb+h]} offen offset:{c*128} {pol}",
                            "store", rd=R("v", r, 4) | R("v", V_O), tag=("st", c, h, qb)))
        return L, M, W, ST
    def place_chain(L, lo, hi):
        g = lo
        prev = None
        for n, ins in enumerate(L):
            mem = ins.kind in ("store", "ds")
            if prev is not None:
                if mem and prev.kind not in ("store", "ds"):
                    g += 1
                if ins.kind == "wait":
                    g += 6
            while g <= hi and not s.fits(g, ins):
                g += 1
            assert g <= hi, (ins.text, lo, hi)
            s.put(g, ins, last=(ins.kind == "wait"))
            prev = ins
        return g + 1
    for c in range(3):
        lo = max(last_acc[(c, db, qb)] for db in range(4) for qb in range(3)) + 5
        lo = max(lo, first_store_lo)
        hi_all = last_acc[(c + 1, 3, 2)] - 4 if c < 2 else N - 2
        span = (hi_all - lo) // 3
        g = lo
        for qb in range(3):
            L, M, W, ST = job(c, qb, V_S)
            g = place_chain(L + M + [W] + ST, max(g, lo + qb * span), hi_all + 3)
    jobs = [job(3, qb, V_P + 24 * qb) for qb in range(3)]
    tail = []
    for qb in range(3):
        L, M, W, ST = jobs[qb]
        tail += L
        if qb > 0:
            tail += [jobs[qb - 1][2]] + jobs[qb - 1][3]
        tail += M
    tail += [jobs[2][2]] + jobs[2][3]
    lin = s.linear()
    tl = [I("s_nop 7", "nop")] + tail
    return lin + tl, s


def max_chain(qb, src, t):
    o = []
    nm = V_NEGM + 4 * qb
    o.append(valu(f"v_max3_f32 v{t}, v{src}, v{src+1}, v{src+2}", rd=R("v", src, 3), wr=R("v", t)))
    o.append(valu(f"v_max_f32 v{t}, v{t}, v{src+3}", rd=R("v", t) | R("v", src + 3), wr=R("v", t)))
    o += cross_max(qb, t)
    for r in range(4):
        o.append(valu(f"v_add_f32 v{src+r}, v{V_NEGM+4*qb+r}, v{src+r}", rd=R("v", src + r) | R("v", V_NEGM + 4 * qb + r), wr=R("v", src + r)))
    return o


def cross_max(qb, t):
    o = []
    nm = V_NEGM + 4 * qb
    o.append(valu(f"v_mov_b32 v{t+1}, v{t}", rd=R("v", t), wr=R("v", t + 1)))
    o.append(I("s_nop 1", "nop2"))
    o.append(valu(f"v_permlane32_swap_b32 v{t}, v{t+1}", rd=R("v", t, 2), wr=R("v", t, 2), kind="perm"))
    o.append(I("s_nop 1", "nop2"))
    o.append(valu(f"v_max_f32 v{t}, v{t}, v{t+1}", rd=R("v", t, 2), wr=R("v", t)))
    o.append(valu(f"v_mov_b32 v{t+1}, v{t}", rd=R("v", t), wr=R("v", t + 1)))
    o.append(I("s_nop 1", "nop2"))
    o.append(valu(f"v_permlane16_swap_b32 v{t}, v{t+1}", rd=R("v", t, 2), wr=R("v", t, 2), kind="perm"))
    o.append(I("s_nop 1", "nop2"))
    o.append(valu(f"v_max_f32 v{t}, v{t}, v{t+1}", rd=R("v", t, 2), wr=R("v", t)))
    for r in range(4):
        o.append(valu(f"v_sub_f32 v{nm+r}, 0, v{t}", rd=R("v", t), wr=R("v", nm + r)))
    return o


def build_prologue(o):
    L = []
    A = L.append
    def S(t): A(salu(t))
    def V(t, rd=(), wr=()): A(valu(t, rd, wr))
    S("s_cmp_ge_u32 s2, 256")
    S("s_cbranch_scc1 L_end")
    S("s_load_dwordx4 s[4:7], s[0:1], 0")
    S("s_load_dwordx4 s[24:27], s[0:1], 16")
    if o.stamps:
        S("s_load_dwordx2 s[60:61], s[0:1], 40")
        S("s_memrealtime s[90:91]")
        if o.stamps != "sp": S("s_memtime s[62:63]")
    V("v_lshrrev_b32 v19, 6, v0")
    V("v_and_b32 v20, 63, v0")
    S("s_and_b32 s46, s2, 7")
    S("s_lshr_b32 s47, s2, 3")
    V(f"v_readfirstlane_b32 s{S_W}, v19")
    S("s_and_b32 s48, s47, 1")
    S("s_lshr_b32 s47, s47, 1")
    S("s_lshl_b32 s46, s46, 4")
    S("s_add_u32 s46, s46, s47")
    S("s_lshl_b32 s47, s46, 1")
    S("s_add_u32 s47, s47, s48")
    S("s_mul_i32 s47, s47, 98304")
    S("s_lshl_b32 s46, s46, 18")
    V("v_lshrrev_b32 v21, 5, v20")
    V("v_and_b32 v22, 31, v20")
    V("v_xor_b32 v22, v22, v21")
    V("v_lshlrev_b32 v22, 4, v22")
    V("v_lshl_add_u32 v22, v21, 9, v22")
    S(f"s_lshl_b32 s49, s{S_W}, 12")
    S("s_add_u32 s49, s49, 96")
    V(f"v_add_u32 v{V_KD[0]}, s49, v22")
    V(f"v_subrev_u32 v{V_KD[1]}, 32, v{V_KD[0]}")
    V(f"v_subrev_u32 v{V_KD[2]}, 64, v{V_KD[0]}")
    V(f"v_add_u32 v{V_KD[3]}, -96, v{V_KD[0]}".replace("-96", "0xffffffa0"))
    S(f"s_mul_i32 s{S_WK}, s{S_W}, {4*KP}")
    S(f"s_mul_i32 s{S_WV}, s{S_W}, {4*VP}")
    V("v_and_b32 v21, 15, v20")
    V("v_lshrrev_b32 v23, 4, v20")
    V("v_lshlrev_b32 v24, 4, v23")
    V("v_lshl_add_u32 v24, v21, 9, v24")
    S(f"s_mul_i32 s50, s{S_W}, 24576")
    V(f"v_add_u32 v{V_QO}, s50, v24")
    S(f"s_mov_b32 s{S_8K}, 8192")
    S(f"s_mov_b32 s{S_16K}, 16384")
    S("s_waitcnt lgkmcnt(0)")
    if o.stamps == "pro": S("s_memtime s[64:65]")
    S(f"s_add_u32 s{S_KSRD}, s6, s46")
    S(f"s_addc_u32 s{S_KSRD+1}, s7, 0")
    S(f"s_sub_u32 s{S_KSRD}, s{S_KSRD}, 96")
    S(f"s_subb_u32 s{S_KSRD+1}, s{S_KSRD+1}, 0")
    S(f"s_mov_b32 s{S_KSRD+2}, {262144+96}")
    S(f"s_mov_b32 s{S_KSRD+3}, 0x00020000")
    L += unit_dma(o, 0)
    S(f"s_add_u32 s{S_QSRD}, s4, s47")
    S(f"s_addc_u32 s{S_QSRD+1}, s5, 0")
    S(f"s_mov_b32 s{S_QSRD+2}, 98304")
    S(f"s_mov_b32 s{S_QSRD+3}, 0x00020000")
    qraw = V_P
    def q_load(f):
        qb, ks = f // 8, f % 8
        soff = ("0", f"s{S_8K}", f"s{S_16K}")[qb]
        r = qraw + 4 * f
        return I(f"buffer_load_dwordx4 {vr(r,4)}, v{V_QO}, s[{S_QSRD}:{S_QSRD+3}], {soff} offen offset:{ks*64} {o.q_pol}", "vmem",
                 rd=R("v", V_QO), wr=R("v", r, 4), tag=("q", qb, ks))
    for f in range(o.nq0):
        A(q_load(f))
    S(f"s_add_u32 s{S_VSRD}, s24, s46")
    S(f"s_addc_u32 s{S_VSRD+1}, s25, 0")
    S(f"s_mov_b32 s{S_VSRD+2}, 262144")
    S(f"s_mov_b32 s{S_VSRD+3}, 0x00020000")
    S(f"s_add_u32 s{S_OSRD}, s26, s47" if not o.st_small else f"s_add_u32 s{S_OSRD}, s26, 0")
    S(f"s_addc_u32 s{S_OSRD+1}, s27, 0")
    S(f"s_mov_b32 s{S_OSRD+2}, 98304")
    S(f"s_mov_b32 s{S_OSRD+3}, 0x00020000")
    if o.touch:
        S(f"s_lshl_b32 s49, s{S_W}, 4")
        V("v_add_u32 v22, s49, v20")
        V("v_lshlrev_b32 v22, 12, v22")
        V("v_cmp_gt_u32 vcc, 16, v20")
        V("v_mov_b32 v24, 0x7ffffff0")
        S("s_nop 0")
        V("v_cndmask_b32 v22, v24, v22, vcc")
        A(I(f"buffer_load_dword v26, v22, s[{S_VSRD}:{S_VSRD+3}], 0 offen", "vmem", tag=("tv",)))
        S(f"s_mul_i32 s49, s{S_W}, 6")
        V("v_add_u32 v22, s49, v20")
        V("v_lshlrev_b32 v22, 12, v22")
        V("v_cmp_gt_u32 vcc, 6, v20")
        S("s_nop 1")
        V("v_cndmask_b32 v22, v24, v22, vcc")
        A(I(f"buffer_load_dword v27, v22, s[{S_OSRD}:{S_OSRD+3}], 0 offen", "vmem", tag=("to",)))
    if o.code_pf:
        S(f"s_getpc_b64 s[{S_PC}:{S_PC+1}]")
        A(I("L_pc:", "label"))
        S(f"s_sub_u32 s{S_CODE}, s{S_PC}, L_pc-{NAME}")
        S(f"s_subb_u32 s{S_CODE+1}, s{S_PC+1}, 0")
        S(f"s_mov_b32 s{S_CODE+2}, L_code_end-{NAME}")
        S(f"s_mov_b32 s{S_CODE+3}, 0x00020000")
        S("s_lshr_b32 s51, s2, 3")
        S("s_and_b32 s51, s51, 31")
        S("s_lshl_b32 s51, s51, 11")
        V("v_lshlrev_b32 v25, 3, v0")
        A(I(f"buffer_load_dwordx2 v[192:193], v25, s[{S_CODE}:{S_CODE+3}], s51 offen", "vmem", tag=("pf",)))
    if o.stamps == "pro": S("s_memtime s[66:67]")
    V("v_bfe_u32 v22, v21, 2, 1")
    V("v_lshlrev_b32 v22, 3, v22")
    V("v_lshrrev_b32 v24, 3, v21")
    V("v_lshl_or_b32 v22, v24, 2, v22")
    V("v_and_b32 v24, 3, v21")
    V("v_or_b32 v22, v22, v24")
    V("v_and_b32 v24, 1, v22")
    V("v_lshrrev_b32 v22, 1, v22")
    V(f"v_mul_u32_u24 v22, {KP}, v22")
    V("v_lshl_add_u32 v22, v24, 9, v22")
    V("v_xor_b32 v24, v23, v24")
    V(f"v_lshl_add_u32 v{V_KR[0]}, v24, 4, v22")
    V(f"v_add_u32 v{V_KR[1]}, {3*SLOT}, v{V_KR[0]}")
    V(f"v_add_u32 v{V_KR[2]}, {6*SLOT}, v{V_KR[0]}")
    V("v_lshrrev_b32 v22, 3, v20")
    V("v_bfe_u32 v24, v22, 1, 1")
    V("v_lshlrev_b32 v24, 2, v24")
    V("v_and_b32 v21, 7, v20")
    V("v_xor_b32 v21, v21, v24")
    V("v_lshlrev_b32 v21, 4, v21")
    V("v_lshl_add_u32 v21, v22, 9, v21")
    S(f"s_lshl_b32 s49, s{S_W}, 14")
    V(f"v_add_u32 v{V_VD[0]}, s49, v21")
    for j in range(1, 4):
        V(f"v_add_u32 v{V_VD[j]}, {(4096-VP)*j}, v{V_VD[0]}")
    V("v_bfe_u32 v21, v20, 2, 2")
    V("v_lshrrev_b32 v22, 1, v23")
    V("v_lshl_add_u32 v22, v22, 2, v21")
    V("v_lshlrev_b32 v22, 7, v22")
    V("v_and_b32 v24, 1, v23")
    V(f"v_mul_u32_u24 v24, {VP}, v24")
    V("v_add_u32 v22, v22, v24")
    V("v_and_b32 v24, 3, v20")
    V("v_lshl_add_u32 v22, v24, 4, v22")
    V("v_bfe_u32 v21, v21, 1, 1")
    V(f"v_lshl_add_u32 v{V_VR[0][0]}, v21, 6, v22")
    V("v_xor_b32 v21, 1, v21")
    V(f"v_lshl_add_u32 v{V_VR[1][0]}, v21, 6, v22")
    for dp in range(2):
        V(f"v_add_u32 v{V_VR[dp][1]}, {3*SLOT}, v{V_VR[dp][0]}")
        V(f"v_add_u32 v{V_VR[dp][2]}, {6*SLOT}, v{V_VR[dp][0]}")
    V("v_and_b32 v21, 15, v20")
    V(f"v_mul_u32_u24 v21, {SCR_PITCH}, v21")
    V("v_lshl_add_u32 v21, v23, 4, v21")
    S(f"s_mul_i32 s49, s{S_W}, {SCR_WAVE}")
    S(f"s_add_u32 s49, s49, {SCR_OFF}")
    V("v_lshrrev_b32 v24, 3, v20")
    V("v_and_b32 v25, 7, v20")
    V(f"v_add_u32 v{V_SW}, s49, v21")
    V(f"v_mul_u32_u24 v21, {SCR_PITCH}, v24")
    V("v_lshl_add_u32 v21, v25, 4, v21")
    V(f"v_add_u32 v{V_SR}, s49, v21")
    V("v_lshlrev_b32 v24, 9, v24")
    V("v_lshl_add_u32 v24, v25, 4, v24")
    S(f"s_mul_i32 s49, s{S_W}, 24576")
    V(f"v_add_u32 v{V_O}, s49, v24")
    for n in range(6):
        S(f"s_mov_b32 s{S_QB[n]}, {n*4096}")
    S(f"s_mov_b32 s{S_C}, 0x3db8aa3b")
    S(f"s_mov_b32 s{S_C+1}, 0x3db8aa3b")
    S(f"s_mov_b32 s{S_TH}, {o.thresh if not o.force_fb else 0xbf800000:#x}")
    S(f"s_mov_b32 s{S_RESTART}, 0")
    S(f"s_mov_b32 s{S_MASK}, 0xffff0000")
    S(f"s_lshl_b32 s{S_TMP+4}, s{S_W}, 2")
    S(f"s_add_u32 s{S_TMP+4}, s{S_TMP+4}, {FLAG_OFF}")
    S("s_mov_b32 s52, 0x3f803f80")
    for r in range(4):
        V(f"v_accvgpr_write_b32 a{A_ONE+r}, s52", wr=R("a", A_ONE + r))
    extra = []
    for n in range(1, o.pro_units):
        u = unit_dma(o, n)
        extra += [u[:3], [u[3]], [u[4]], [u[5]]]
    T = 160
    mq = []
    done_m = 0
    chained = 0
    def emit_mfma(f):
        qb, ks = f // 8, f % 8
        if qb == 0:
            A(wait_ds(("kf", ks)))
        A(mfma("v", S_reg(0, qb), "a", A_KF + 4 * ks, "a", A_Q + 4 * f, c=("zero" if ks == 0 else None)))
    for f in range(24):
        qb, ks = f // 8, f % 8
        r = qraw + 4 * f
        tb = T + 16 * (f % 2)
        A(wait_vm(("q", qb, ks)))
        if f + o.nq0 < 24:
            A(q_load(f + o.nq0))
        elif extra:
            L += extra.pop(0)
        for j in range(4):
            V(f"v_lshlrev_b32 v{tb+2*j}, 16, v{r+j}", rd=R("v", r + j), wr=R("v", tb + 2 * j))
            V(f"v_and_b32 v{tb+2*j+1}, s{S_MASK}, v{r+j}", rd=R("v", r + j), wr=R("v", tb + 2 * j + 1))
        for j in range(4):
            if o.pk_scale:
                V(f"v_pk_mul_f32 {vr(tb+2*j,2)}, {vr(tb+2*j,2)}, s[{S_C}:{S_C+1}]", rd=R("v", tb + 2 * j, 2), wr=R("v", tb + 2 * j, 2))
            else:
                V(f"v_mul_f32 v{tb+2*j}, s{S_C}, v{tb+2*j}", rd=R("v", tb + 2 * j), wr=R("v", tb + 2 * j))
                V(f"v_mul_f32 v{tb+2*j+1}, s{S_C}, v{tb+2*j+1}", rd=R("v", tb + 2 * j + 1), wr=R("v", tb + 2 * j + 1))
        for j in range(4):
            V(f"v_cvt_pk_bf16_f32 v{tb+8+j}, v{tb+2*j}, v{tb+2*j+1}", rd=R("v", tb + 2 * j, 2), wr=R("v", tb + 8 + j))
        for j in range(4):
            V(f"v_accvgpr_write_b32 a{A_Q+4*f+j}, v{tb+8+j}", rd=R("v", tb + 8 + j), wr=R("a", A_Q + 4 * f + j))
        if f == 2:
            if o.stamps == "pro": S("s_memtime s[70:71]")
            A(I("s_barrier", "bar"))
            if o.stamps == "pro": S("s_memtime s[72:73]")
            if o.stamps and o.stamps not in ("pro", "sp"):
                S("s_memtime s[64:65]")
            for F in range(8 + o.DK):
                A(k_read(F))
        if f >= 4:
            k = 0
            while done_m < f and k < 2:
                emit_mfma(done_m); done_m += 1; k += 1
        if chained < 2 and done_m >= 8 * (chained + 1) + 1:
            L += max_chain(chained, S_reg(0, chained), 24)
            chained += 1
    while extra:
        L += extra.pop(0)
    A(I("s_nop 1", "nop2"))
    while done_m < 24:
        emit_mfma(done_m); done_m += 1
    while chained < 2:
        A(I("s_nop 7", "nop"))
        L += max_chain(chained, S_reg(0, chained), 24); chained += 1
    A(I("s_nop 7", "nop"))
    L += max_chain(2, S_reg(0, 2), 24)
    A(wait_ds(("kf", 9)))
    if o.stamps and o.stamps != "sp":
        S("s_memtime s[66:67]" if o.stamps != "pro" else "s_memtime s[74:75]")
    A(I("L_join:", "label"))
    return L


def build_fallback(o):
    t = []
    A = t.append
    A("L_fallback:")
    A("    s_waitcnt vmcnt(0) lgkmcnt(0)")
    A("    s_barrier")
    vm = (19, 20, 21)
    for qb in range(3):
        A(f"    v_mov_b32 v{vm[qb]}, 0xff800000")
    A("    s_mov_b32 s53, 0")
    A("L_fb_loop:")
    A(f"    s_mov_b32 m0, s{S_WK}")
    A(f"    s_lshl_b32 s{S_OFF}, s53, 14")
    for j in range(4):
        A(f"    buffer_load_dwordx4 v{V_KD[j]}, s[{S_KSRD}:{S_KSRD+3}], s{S_OFF} offen offset:{j*KP} lds")
    A("    s_waitcnt vmcnt(0)")
    A("    s_barrier")
    for kb in range(2):
        for ks in range(8):
            A(f"    ds_read_b128 {ar(A_KF+4*ks,4)}, v{V_KR[0]} offset:{kb*8*KP+ks*64}")
        A("    s_waitcnt lgkmcnt(0)")
        for ks in range(8):
            for qb in range(3):
                c = "0" if ks == 0 else vr(V_S + 4 * qb, 4)
                A(f"    v_mfma_f32_16x16x32_bf16 {vr(V_S+4*qb,4)}, {ar(A_KF+4*ks,4)}, {ar(A_Q+4*(qb*8+ks),4)}, {c}")
        A("    s_nop 7")
        A("    s_nop 7")
        for qb in range(3):
            b = V_S + 4 * qb
            A(f"    v_max3_f32 v{vm[qb]}, v{vm[qb]}, v{b}, v{b+1}")
            A(f"    v_max3_f32 v{vm[qb]}, v{vm[qb]}, v{b+2}, v{b+3}")
        A("    s_nop 3")
    A("    s_barrier")
    A("    s_add_u32 s53, s53, 1")
    A("    s_cmp_lt_u32 s53, 16")
    A("    s_cbranch_scc1 L_fb_loop")
    for qb in range(3):
        A(f"    v_mov_b32 v24, v{vm[qb]}")
        for ins in cross_max(qb, 24):
            A("    " + ins.text)
    for n in range(o.pro_units):
        for ins in unit_dma(o, n):
            A("    " + ins.text)
    A("    s_waitcnt vmcnt(0)")
    A("    s_barrier")
    for F in range(8 + o.DK):
        A("    " + k_read(F).text)
        if F == 7:
            A("    s_waitcnt lgkmcnt(0)")
    A("    s_waitcnt lgkmcnt(0)")
    for ks in range(8):
        for qb in range(3):
            A("    " + mfma("v", S_reg(0, qb), "a", A_KF + 4 * ks, "a", A_Q + 4 * (qb * 8 + ks), c=("zero" if ks == 0 else None)).text)
    A("    s_nop 7")
    A("    s_nop 7")
    for qb in range(3):
        for r in range(4):
            A(f"    v_add_f32 v{S_reg(0,qb)+r}, v{V_NEGM+4*qb+r}, v{S_reg(0,qb)+r}")
    A(f"    s_mov_b32 s{S_RESTART}, 1")
    A("    s_branch L_join")
    return t


def resolve(lin):
    ds, vm = [], []
    out = []
    for ins in lin:
        if ins.kind == "wait":
            cls, tag = ins.wait
            q = ds if cls == "ds" else vm
            idx = max(i for i, t in enumerate(q) if t == tag)
            n = len(q) - 1 - idx
            lim = 15 if cls == "ds" else 63
            n = min(n, lim)
            ins.text = f"s_waitcnt {'lgkmcnt' if cls == 'ds' else 'vmcnt'}({n})"
        elif ins.kind == "ds":
            ds.append(ins.tag)
        elif ins.kind in ("dma", "store", "vmem"):
            vm.append(ins.tag)
        out.append(ins)
    return out


def states(ins):
    if ins.kind in ("label", "raw"):
        return 0
    m = re.match(r"s_nop (\d+)", ins.text or "")
    return int(m.group(1)) + 1 if m else 1


def hazard_check(lin):
    errs = []
    VAL = ("valu", "trans", "perm")
    last_mfma_wr, last_valu_wr, last_trans_wr, last_srcc, last_store_rd = {}, {}, {}, {}, {}
    pos = 0
    last_m0 = -10
    pending_ld = {}
    for ins in lin:
        def need(d, reg, n, what):
            if reg in d and pos - d[reg] - 1 < n:
                errs.append(f"{what}: {ins.text} reg {reg} dist {pos - d[reg] - 1} < {n}")
        if ins.kind == "mfma":
            for r in ins.rd:
                need(last_valu_wr, r, 2, "valu->mfma")
            for r in ins.rd - ins.srcc:
                need(last_mfma_wr, r, 8, "mfma->mfma A/B")
            for r in ins.srcc:
                if r in last_mfma_wr and ins.srcc != ins.wr:
                    need(last_mfma_wr, r, 6, "mfma->mfma C overlap")
            if ins.srcc and ins.srcc != ins.wr:
                pass
        elif ins.kind in VAL:
            for r in ins.rd | ins.wr:
                need(last_mfma_wr, r, 8, "mfma->valu")
            for r in ins.rd:
                need(last_trans_wr, r, 1, "trans->valu")
            for r in ins.wr:
                need(last_srcc, r, 3, "mfma C war")
                need(last_store_rd, r, 2, "store war")
            if ins.kind == "perm":
                for r in ins.rd:
                    need(last_valu_wr, r, 2, "valu->perm")
            if "readfirstlane" in ins.text:
                for r in ins.rd:
                    need(last_valu_wr, r, 1, "valu->readfirstlane")
        elif ins.kind in ("ds", "dma", "store", "vmem"):
            for r in ins.rd | ins.wr:
                need(last_mfma_wr, r, 8, "mfma->mem")
            if ins.kind == "dma" and pos - last_m0 - 1 < 1:
                errs.append(f"m0 hazard {ins.text}")
        if ins.text and re.match(r"s_\w+ m0,", ins.text):
            last_m0 = pos
        if ins.kind == "mfma":
            for r in ins.wr: last_mfma_wr[r] = pos
            for r in ins.srcc: last_srcc[r] = pos
        elif ins.kind in VAL:
            for r in ins.wr:
                last_valu_wr[r] = pos
                last_mfma_wr.pop(r, None)
                if ins.kind == "trans": last_trans_wr[r] = pos
                else: last_trans_wr.pop(r, None)
        elif ins.kind == "store":
            for r in ins.rd: last_store_rd[r] = pos
        pos += states(ins)
    return errs


def dataflow_check(lin):
    errs = []
    ds, vm = [], []
    pend = {}
    done = {"ds": -1, "vm": -1}
    for ins in lin:
        if ins.kind == "wait":
            m = re.match(r"s_waitcnt (\w+)\((\d+)\)", ins.text)
            cls = "ds" if m.group(1) == "lgkmcnt" else "vm"
            q = ds if cls == "ds" else vm
            done[cls] = max(done[cls], len(q) - 1 - int(m.group(2)))
            continue
        if ins.text and ins.text.startswith("s_waitcnt"):
            if "lgkmcnt(0)" in ins.text: done["ds"] = len(ds) - 1
            if "vmcnt(0)" in ins.text: done["vm"] = len(vm) - 1
        for r in ins.rd | (ins.wr if ins.kind not in ("ds", "vmem") else set()):
            if r in pend:
                cls, idx = pend[r]
                if idx > done[cls]:
                    errs.append(f"unwaited load reg {r} used by {ins.text}")
        if ins.kind == "ds":
            ds.append(ins.tag)
            for r in ins.wr: pend[r] = ("ds", len(ds) - 1)
        elif ins.kind in ("dma", "store", "vmem"):
            vm.append(ins.tag)
            for r in ins.wr: pend[r] = ("vm", len(vm) - 1)
    return errs


def generate(o):
    pro = build_prologue(o)
    main, s = build_main(o)
    lin = resolve(pro + main)
    errs = hazard_check(lin) + dataflow_check(lin)
    txt = []
    txt.append(f"; @launch grid=(256,1,1) block=(256,1,1) lds={LDS_BYTES}")
    txt.append('.amdgcn_target "amdgcn-amd-amdhsa--gfx950"')
    txt.append(".text")
    txt.append(f".globl {NAME}")
    txt.append(".p2align 8")
    txt.append(f".type {NAME},@function")
    txt.append(f"{NAME}:")
    for ins in lin:
        txt.append(ins.text if ins.kind == "label" else "    " + ins.text)
    if o.stamps == "dbg":
        txt += ["    s_memrealtime s[76:77]", "    s_waitcnt vmcnt(0)", "    s_memrealtime s[78:79]", "    s_load_dwordx2 s[60:61], s[0:1], 32", "    s_waitcnt lgkmcnt(0)",
                "    s_mov_b32 s56, s60", "    s_mov_b32 s57, s61", "    s_mov_b32 s58, 256", "    s_mov_b32 s59, 0x20000",
                "    s_mov_b64 exec, 1",
                "    v_mov_b32 v64, s78", "    s_not_b32 s54, s62", "    v_mov_b32 v65, s54", "    v_mov_b32 v24, 0", "    v_mov_b32 v66, s62",
                "    buffer_atomic_umax v64, v24, s[56:59], 0 offen", "    buffer_atomic_umax v65, v24, s[56:59], 0 offen offset:4",
                "    buffer_atomic_umax v66, v24, s[56:59], 0 offen offset:8"]
        for n in range(8):
            txt += [f"    s_sub_u32 s54, s{64+2*n}, s{62+2*n}", f"    v_mov_b32 v{68+n}, s54",
                    f"    buffer_atomic_umax v{68+n}, v24, s[56:59], 0 offen offset:{12+4*n}"]
        txt += ["    s_sub_u32 s54, s78, s62", "    v_mov_b32 v80, s54", "    buffer_atomic_add v80, v24, s[56:59], 0 offen offset:44",
                "    v_mov_b32 v81, s54", "    buffer_atomic_umax v81, v24, s[56:59], 0 offen offset:48",
                "    s_sub_u32 s54, s64, s62", "    v_mov_b32 v82, s54", "    buffer_atomic_add v82, v24, s[56:59], 0 offen offset:52",
                "    s_sub_u32 s54, s76, s66", "    v_mov_b32 v83, s54", "    buffer_atomic_add v83, v24, s[56:59], 0 offen offset:56",
                "    s_sub_u32 s54, s78, s76", "    v_mov_b32 v84, s54", "    buffer_atomic_add v84, v24, s[56:59], 0 offen offset:60",
                "    s_waitcnt vmcnt(0)"]
    elif o.stamps == "sp":
        txt += ["    s_memrealtime s[76:77]", "    s_waitcnt vmcnt(0)", "    s_memrealtime s[92:93]", "    s_waitcnt lgkmcnt(0)",
                "    v_writelane_b32 v0, s66, 31", "    v_writelane_b32 v0, s68, 63", "    v_writelane_b32 v0, s90, 0", "    v_writelane_b32 v0, s76, 32",
                "    s_mov_b32 s56, s60", "    s_mov_b32 s57, s61", "    s_mov_b32 s58, 0x100000", "    s_mov_b32 s59, 0x20000",
                f"    s_lshl_b32 s54, s2, 2", f"    s_add_u32 s54, s54, s{S_W}", "    s_lshl_b32 s54, s54, 8",
                "    v_mbcnt_lo_u32_b32 v24, -1, 0", "    v_mbcnt_hi_u32_b32 v24, -1, v24", "    v_lshlrev_b32 v24, 2, v24", "    v_add_u32 v24, s54, v24",
                "    buffer_store_dword v0, v24, s[56:59], 0 offen", "    s_waitcnt vmcnt(0)"]
    elif o.stamps:
        txt += ["    s_memtime s[76:77]", "    s_waitcnt vmcnt(0)", "    s_memtime s[78:79]", "    s_memrealtime s[92:93]", "    s_waitcnt lgkmcnt(0)",
                "    s_mov_b32 s56, s60", "    s_mov_b32 s57, s61", "    s_mov_b32 s58, 0x100000", "    s_mov_b32 s59, 0x20000"]
        for n in range(9):
            txt.append(f"    v_mov_b32 v{64+n}, s{62+2*n}")
        txt += ["    v_mov_b32 v73, s90", "    v_mov_b32 v74, s92", "    v_mov_b32 v75, 0",
                f"    s_lshl_b32 s54, s2, 2", f"    s_add_u32 s54, s54, s{S_W}", "    s_lshl_b32 s54, s54, 6", "    v_mov_b32 v24, s54",
                "    s_mov_b64 exec, 1",
                "    buffer_store_dwordx4 v[64:67], v24, s[56:59], 0 offen",
                "    buffer_store_dwordx4 v[68:71], v24, s[56:59], 0 offen offset:16",
                "    buffer_store_dwordx4 v[72:75], v24, s[56:59], 0 offen offset:32",
                "    s_waitcnt vmcnt(0)"]
    txt.append("L_end:")
    txt.append("    s_endpgm")
    txt += build_fallback(o)
    txt.append("L_code_end:")
    txt.append("    s_endpgm")
    txt.append('.section .rodata,"a"')
    txt.append(".p2align 6")
    txt.append(f".amdhsa_kernel {NAME}")
    txt += ["  .amdhsa_next_free_vgpr 512", "  .amdhsa_next_free_sgpr 96", "  .amdhsa_accum_offset 256",
            "  .amdhsa_group_segment_fixed_size 0", "  .amdhsa_kernarg_size 48", "  .amdhsa_user_sgpr_count 2",
            "  .amdhsa_user_sgpr_kernarg_segment_ptr 1", "  .amdhsa_system_sgpr_workgroup_id_x 1",
            "  .amdhsa_float_denorm_mode_32 3", ".end_amdhsa_kernel"]
    out = "\n".join(txt) + "\n"
    if o.stamps in ('rt', 'pro', 'sp', 'dbg'):
        out = out.replace('s_memtime', 's_memrealtime')
    return out, errs, s, lin


def stats(s):
    over = [(i, s.load(i)) for i in range(len(s.M)) if s.load(i) > 8]
    tot = sum(max(16, 8 + s.load(i)) for i in range(len(s.M)))
    return f"mfma={len(s.M)} overfull gaps={len(over)} est cycles={tot} forced={s.over}"


def make(**kw):
    o = Opt()
    for k, v in kw.items():
        assert hasattr(o, k), k
        setattr(o, k, v)
    txt, errs, s, lin = generate(o)
    return txt, errs, s, lin


if __name__ == "__main__":
    kw = {}
    out = "standalone__gqa_softmax__near_ridge.s"
    for a in sys.argv[1:]:
        if a.startswith("-o"):
            out = a[2:]
        else:
            k, v = a.split("=")
            kw[k] = eval(v)
    txt, errs, s, lin = make(**kw)
    for e in errs[:40]:
        print("HAZARD", e)
    print(len(errs), "hazards;", stats(s), "; bytes of text", len(txt))
    open(out, "w").write(txt)
```
